```python
import torch

def _softmax(x, axis=-1):
    return torch.softmax(x, dim=axis)
def _gelu(x):
    return torch.nn.functional.gelu(x, approximate="tanh")
def _silu(x):
    return torch.nn.functional.silu(x)
def _sigmoid(x):
    return torch.sigmoid(x)
def _layernorm(x, axis=-1, eps=1e-5):
    m = x.mean(dim=axis, keepdim=True)
    v = x.var(dim=axis, keepdim=True, unbiased=False)
    return (x - m) / torch.sqrt(v + eps)
def _scatter_add(tgt, idx, src, axis=0):
    return tgt.clone().index_add_(axis, idx, src)
def _segment_sum(src, seg, n):
    out = torch.zeros((n,) + src.shape[1:], dtype=src.dtype)
    return out.index_add_(0, seg, src)
def _pad(x, pw):
    flat = tuple(v for pair in reversed(pw) for v in pair)
    return torch.nn.functional.pad(x, flat)

kernel_name = 'interleave_layers__sliding_block__mixer_token_mlp__prompt'

def setup_inputs():

    _w = (lambda a: (lambda t: t.to(torch.bfloat16) if t.is_floating_point() else t)(torch.as_tensor(a)))
    def _A_setup():
        B, S, D = 1, 2048, 512
        return {
            "x": _w((lambda *s: torch.randn(*s, dtype=torch.bfloat16) * 0.05)(B, S, D)),
            "wqkv": _w((lambda *s: torch.randn(*s, dtype=torch.bfloat16) * 0.05)(D, 3 * D)),
            "wo": _w((lambda *s: torch.randn(*s, dtype=torch.bfloat16) * 0.05)(D, D)),
        }
    _A_in = _A_setup()

    def _B_setup():
        B, S, D, F = 1, 2048, 512, 1376
        return {
            "x": _w((lambda *s: torch.randn(*s, dtype=torch.bfloat16) * 0.05)(B, S, D)),
            "w1": _w((lambda *s: torch.randn(*s, dtype=torch.bfloat16) * 0.8)(S, F) * (S ** -0.5)),
            "b1": _w((lambda *s: torch.randn(*s, dtype=torch.bfloat16) * 0.8)(F) * 0.02),
            "w2": _w((lambda *s: torch.randn(*s, dtype=torch.bfloat16) * 0.8)(F, S) * (F ** -0.5)),
            "b2": _w((lambda *s: torch.randn(*s, dtype=torch.bfloat16) * 0.8)(S) * 0.02),
        }
    _B_in = _B_setup()

    return {
        "A_x": _A_in["x"],
        "A_wqkv": _A_in["wqkv"],
        "A_wo": _A_in["wo"],
        "B_x": _B_in["x"],
        "B_w1": _B_in["w1"],
        "B_b1": _B_in["b1"],
        "B_w2": _B_in["w2"],
        "B_b2": _B_in["b2"],
    }

def reference(A_x, A_wqkv, A_wo, B_x, B_w1, B_b1, B_w2, B_b2):
    def _A_ref(x, wqkv, wo):
        B, S, D = x.shape
        H = 32; Dh = D // H; W = 256
        qkv = (lambda x, *d: x.permute(*d))((x @ wqkv).reshape(B, S, 3, H, Dh), 2, 0, 3, 1, 4)
        q, k, v = qkv[0], qkv[1], qkv[2]
        scores = torch.einsum("bhqd,bhkd->bhqk", q, k) * (Dh ** -0.5)
        idx = torch.arange(S)
        mask = (idx[:, None] - idx[None, :] >= 0) & (idx[:, None] - idx[None, :] < W)
        scores = torch.where(mask[None, None], scores, -1e9)
        p = _softmax(scores, axis=-1)
        o = torch.einsum("bhqk,bhkd->bhqd", p, v)
        return (lambda x, *d: x.permute(*d))(o, 0, 2, 1, 3).reshape(B, S, D) @ wo

    def _B_ref(x, w1, b1, w2, b2):
        B, S, D = x.shape
        h = _layernorm(x, axis=-1)
        u = torch.einsum("bsd,sf->bdf", h, w1) + b1
        u = _gelu(u)
        y = torch.einsum("bdf,fs->bds", u, w2) + b2
        return (lambda x, *d: x.permute(*d))(y, 0, 2, 1)

    x = A_x
    x = x + _A_ref(_layernorm(x, axis=-1), A_wqkv, A_wo)
    x = x + _B_ref(_layernorm(x, axis=-1), B_w1, B_b1, B_w2, B_b2)
    x = x + _A_ref(_layernorm(x, axis=-1), A_wqkv, A_wo)
    x = x + _B_ref(_layernorm(x, axis=-1), B_w1, B_b1, B_w2, B_b2)
    return x
```

```python
import re

_REG = re.compile(r"^(-|\|)?([vas])(?:\[(\d+):(\d+)\]|(\d+))\|?$")


def regs_of(tok):
    tok = tok.strip()
    if tok.startswith("abs(") or tok.startswith("neg("):
        tok = tok[4:-1]
    if tok in ("vcc", "vcc_lo", "vcc_hi"):
        return {("vcc", 0)}
    if tok == "exec":
        return {("exec", 0)}
    if tok == "m0":
        return {("m0", 0)}
    m = _REG.match(tok)
    if not m:
        return set()
    k = m.group(2)
    if m.group(3) is not None:
        return {(k, i) for i in range(int(m.group(3)), int(m.group(4)) + 1)}
    return {(k, int(m.group(5)))}


TRANS = ("v_exp_f32", "v_log_f32", "v_rcp_f32", "v_rsq_f32", "v_sqrt_f32", "v_sin_f32", "v_cos_f32")


class Ins:
    __slots__ = ("text", "op", "dst", "src", "kind", "passes", "srcc")

    def __init__(self, text):
        self.text = text
        t = text.split(";")[0].strip()
        self.dst, self.src, self.srcc = set(), set(), set()
        self.passes = 0
        if t.endswith(":") or t == "" or t.startswith("."):
            self.op, self.kind = t, "label"
            return
        parts = t.split(None, 1)
        op = parts[0]
        self.op = op
        ops = []
        if len(parts) > 1:
            ops = [o.strip() for o in parts[1].split(",")]
            last = ops[-1].split()
            if last:
                ops[-1] = last[0]
        R = [regs_of(o) for o in ops]
        if op.startswith("v_mfma"):
            self.kind = "mfma"
            self.passes = 8 if "32x32" in op else 4
            self.dst = R[0]
            self.src = R[1] | R[2] | R[3]
            self.srcc = R[3]
        elif op.startswith("buffer_load") or op.startswith("global_load"):
            self.kind = "vmem"
            if " lds" in t:
                self.src = set().union(*R) | {("m0", 0)}
            else:
                self.dst = R[0]
                self.src = set().union(*R[1:])
        elif op.startswith("buffer_store") or op.startswith("global_store") or "atomic" in op:
            self.kind = "vmem"
            self.src = set().union(*R)
        elif op.startswith("ds_read"):
            self.kind = "ds"
            self.dst = R[0]
            self.src = set().union(*R[1:])
        elif op.startswith("ds_write"):
            self.kind = "ds"
            self.src = set().union(*R)
        elif op.startswith("v_"):
            self.kind = "valu"
            if op.startswith("v_permlane") and "swap" in op:
                self.dst = R[0] | R[1]
                self.src = R[0] | R[1]
            elif op.startswith("v_cmp"):
                self.dst = R[0]
                self.src = set().union(*R[1:])
            elif op.startswith(("v_fmac", "v_dot2c", "v_pk_fmac")):
                self.dst = R[0]
                self.src = set().union(*R)
            elif op.startswith("v_cndmask") and len(ops) == 3:
                self.dst = R[0]
                self.src = R[1] | R[2] | {("vcc", 0)}
            elif op.startswith(("v_add_co", "v_sub_co", "v_addc_co")):
                self.dst = R[0] | R[1]
                self.src = set().union(*R[2:])
            else:
                self.dst = R[0]
                self.src = set().union(*R[1:]) if len(R) > 1 else set()
        elif op.startswith("s_"):
            self.kind = "salu"
            if op.startswith(("s_cmp", "s_cbranch", "s_branch", "s_waitcnt", "s_nop", "s_barrier", "s_sleep",
                              "s_endpgm", "s_setprio", "s_bitcmp")):
                self.src = set().union(*R) if R else set()
            else:
                self.dst = R[0] if R else set()
                self.src = set().union(*R[1:]) if len(R) > 1 else set()
        else:
            raise ValueError("unknown instruction: " + text)

    def states(self):
        if self.kind == "label":
            return 0
        if self.op == "s_nop":
            return int(self.text.split()[1], 0) + 1
        return 1


def _vg(s):
    return {r for r in s if r[0] in ("v", "a")}


def _sg(s):
    return {r for r in s if r[0] in ("s", "vcc")}


def required_states(p, c):
    need = 0
    pv_d, cv_s, cv_d = _vg(p.dst), _vg(c.src), _vg(c.dst)
    if p.kind == "valu":
        if pv_d & cv_s:
            if c.kind == "mfma":
                need = max(need, 2)
            if c.op.startswith("v_permlane") or "dpp" in c.text:
                need = max(need, 2)
            if c.op.startswith(("v_readlane", "v_readfirstlane")):
                need = max(need, 1)
            if p.op.startswith(TRANS) and c.kind in ("valu", "mfma", "ds", "vmem"):
                need = max(need, 1)
            if p.op.startswith("v_dot2") and not c.op.startswith("v_dot2"):
                need = max(need, 3)
            if p.op.startswith("v_dot2") and c.op.startswith("v_dot2"):
                toks = [o.strip() for o in c.text.split(None, 1)[1].split(",")]
                ab = regs_of(toks[1]) | regs_of(toks[2].split()[0])
                if pv_d & ab:
                    need = max(need, 3)
        if p.op.startswith("v_dot2") and (pv_d & cv_d) and not c.op.startswith("v_dot2"):
            need = max(need, 3)
        ps = _sg(p.dst)
        if ps & _sg(c.src):
            if c.kind == "valu":
                need = max(need, 4 if c.op.startswith(("v_readlane", "v_writelane")) else 2)
            elif c.kind == "vmem":
                need = max(need, 5)
            elif c.kind == "salu":
                need = max(need, 1)
    if p.kind == "mfma":
        big = p.passes == 8
        if c.kind == "mfma":
            if pv_d & _vg(c.srcc):
                if not (pv_d == _vg(c.srcc) and p.passes == c.passes):
                    need = max(need, 10 if big else 6)
            ab = _vg(c.src) - _vg(c.srcc) if c.srcc else _vg(c.src)
            toks = [o.strip() for o in c.text.split(None, 1)[1].split(",")]
            ab = _vg(regs_of(toks[1]) | regs_of(toks[2]))
            if pv_d & ab:
                need = max(need, 12 if big else 8)
            if (pv_d & cv_d) and not (pv_d == cv_d and p.passes == c.passes):
                need = max(need, 10 if big else 6)
        else:
            if pv_d & (cv_s | cv_d):
                need = max(need, 12 if big else 8)
            if c.kind == "valu" and (_vg(p.srcc) & cv_d):
                need = max(need, 7 if big else 3)
    if p.kind == "vmem" and ("store" in p.op) and ("x4" in p.op or "x3" in p.op):
        if _vg(p.src) & cv_d:
            need = max(need, 2)
    if p.kind == "salu" and ("m0", 0) in p.dst and ("m0", 0) in c.src:
        need = max(need, 1)
    return need


class Emitter:
    def __init__(self):
        self.ins = []
        self.stubs = []
        self.vmq = []
        self.dsq = []
        self.nid = 0
        self.nlabel = 0

    def new_label(self, base):
        self.nlabel += 1
        return "L%s_%d" % (base, self.nlabel)

    def I(self, text):
        self.ins.append(Ins(text))

    def lines(self, text):
        for t in text.strip().split("\n"):
            t = t.strip()
            if t:
                self.I(t)

    def label(self, name):
        self.I(name + ":")

    def vm(self, text):
        self.I(text)
        self.nid += 1
        self.vmq.append(self.nid)
        return self.nid

    def ds(self, text):
        self.I(text)
        self.nid += 1
        self.dsq.append(self.nid)
        return self.nid

    def wait_vm(self, opid):
        if opid not in self.vmq:
            return
        i = self.vmq.index(opid)
        n = len(self.vmq) - 1 - i
        self.I("s_waitcnt vmcnt(%d)" % min(n, 63))
        if n <= 63:
            self.vmq = self.vmq[i + 1:]
        else:
            self.vmq = self.vmq[len(self.vmq) - 63:]

    def wait_ds(self, opid):
        if opid not in self.dsq:
            return
        i = self.dsq.index(opid)
        n = len(self.dsq) - 1 - i
        assert n <= 15 or True
        self.I("s_waitcnt lgkmcnt(%d)" % min(n, 15))
        if n <= 15:
            self.dsq = self.dsq[i + 1:]
        else:
            self.dsq = self.dsq[len(self.dsq) - 15:]

    def drain_vm(self):
        self.I("s_waitcnt vmcnt(0)")
        self.vmq = []

    def drain_ds(self):
        self.I("s_waitcnt lgkmcnt(0)")
        self.dsq = []

    def drain(self):
        self.I("s_waitcnt vmcnt(0) lgkmcnt(0)")
        self.vmq, self.dsq = [], []

    def barrier(self):
        self.drain_ds()
        self.I("s_barrier")

    def begin_stub(self):
        self._saved = (self.ins, self.vmq, self.dsq)
        self.ins, self.vmq, self.dsq = [], [], []

    def end_stub(self):
        self.stubs.append(self.ins)
        self.ins, self.vmq, self.dsq = self._saved

    @staticmethod
    def fix_hazards(ins):
        out = []
        window = []
        for c in ins:
            if c.kind == "label":
                out.append(c)
                continue
            need = 0
            dist = 0
            for p in reversed(window):
                r = required_states(p, c)
                if r > dist:
                    need = max(need, r - dist)
                dist += p.states()
                if dist >= 24:
                    break
            while need > 0:
                n = min(need, 16)
                nop = Ins("s_nop %d" % (n - 1))
                out.append(nop)
                window.append(nop)
                need -= n
            out.append(c)
            window.append(c)
            if len(window) > 40:
                window = window[-40:]
        return out

    def text(self):
        res = []
        main = self.fix_hazards(self.ins)
        for i in main:
            res.append(i.text if i.kind == "label" else "    " + i.text)
        for st in self.stubs:
            for i in self.fix_hazards(st):
                res.append(i.text if i.kind == "label" else "    " + i.text)
        return "\n".join(res)


def vr(base, n=1):
    return "v%d" % base if n == 1 else "v[%d:%d]" % (base, base + n - 1)


def ar(base, n=1):
    return "a%d" % base if n == 1 else "a[%d:%d]" % (base, base + n - 1)


def sr(base, n=1):
    return "s%d" % base if n == 1 else "s[%d:%d]" % (base, base + n - 1)
```

```python
import argparse
import math
import os
import sys

sys.path.insert(0, os.path.dirname(os.path.abspath(__file__)))
from asmlib import Emitter, vr, ar, sr

KNAME = "interleave_layers__sliding_block__mixer_token_mlp__prompt_kernel"

MB = 1 << 20
WS_KV = [0 * MB, 4 * MB]
WS_O = [8 * MB, 10 * MB]
WS_H = [12 * MB, 14 * MB]
WS_U = [16 * MB, 18 * MB]
WS_X0 = 20 * MB
WS_ST = [22 * MB, 22 * MB + 256 * 1024]
WS_PROF = 24 * MB
WS_BYTES = 32 * MB

LDS_BYTES = 163840
L_W = 0
KVB = 1152
KVP = 12 * KVB
L_KV = 0
L_ONES = 4 * KVP
L_WO = 57344
L_EX = 122880
L_T = 139264
L_RED = 98304
L_TRS = 147968
L_CSP = 147968
L_CS = 160256

S_X, S_WQKV, S_WO, S_W1, S_B1, S_W2, S_B2, S_OUT, S_DBG, S_WS = 4, 8, 12, 16, 20, 24, 28, 32, 36, 40
S_MASK = 44
S_WAVE, S_RB, S_HP, S_SB, S_J, S_J4, S_T, S_NSKIP, S_BUDGET = 76, 77, 78, 79, 80, 81, 82, 83, 84
S_ONES = 85
S_B0, S_B1X, S_B2X = 86, 87, 88
S_T0, S_T1, S_T2, S_T3 = 89, 90, 91, 92
S_PC = 94
S_CODE = 96
S_KH, S_SH = 100, 101

V_LANE = 0
V_B2 = 1
V_XR = 2
VT = 10
W2_V0 = 144
W2_A0 = 192
NEG_INF = 0xFF800000
SCALE_Q = 0.25 * math.log2(math.e)


def f32(x):
    import struct
    return struct.unpack("<I", struct.pack("<f", x))[0]


def w2_reg(i, off, n):
    return ar(W2_A0 + 8 * i + off, n) if i < 8 else vr(W2_V0 + 8 * (i - 8) + off, n)


def w1_reg(i, off, n):
    return ar(12 * i + off, n)


class Gen:
    def __init__(self, opt):
        self.o = opt
        self.e = Emitter()
        self.nstamp = 0

    def stamp(self, name):
        if not self.o.prof:
            return
        e = self.e
        idx = self.nstamp
        self.nstamp += 1
        print("stamp %d: %s" % (idx, name), file=sys.stderr)
        e.drain_ds()
        e.I("s_memrealtime s[98:99]")
        e.I("s_waitcnt lgkmcnt(0)")
        e.I("s_lshl_b32 s%d, s2, 2" % S_T3)
        e.I("s_add_u32 s%d, s%d, s%d" % (S_T3, S_T3, S_WAVE))
        e.I("s_lshl_b32 s%d, s%d, 9" % (S_T3, S_T3))
        e.I("s_add_u32 s%d, s%d, 0x%x" % (S_T3, S_T3, WS_PROF + idx * 8))
        e.I("v_mov_b32 v140, s98")
        e.I("v_mov_b32 v141, s99")
        e.I("v_mov_b32 v142, 0")
        e.vm("buffer_store_dwordx2 v[140:141], v142, %s, s%d offen" % (sr(S_WS, 4), S_T3))

    def check(self, regs, reissue, name, tmp):
        e = self.e
        retry, back = e.new_label("rt_" + name), e.new_label("bk_" + name)

        def chain():
            r = list(regs)
            e.I("v_max3_u32 v%d, v%d, v%d, v%d" % (tmp, r[0], r[1], r[2]))
            k = 3
            while k + 1 < len(r):
                e.I("v_max3_u32 v%d, v%d, v%d, v%d" % (tmp, tmp, r[k], r[k + 1]))
                k += 2
            if k < len(r):
                e.I("v_max_u32 v%d, v%d, v%d" % (tmp, tmp, r[k]))
            e.I("v_cmp_eq_u32 vcc, -1, v%d" % tmp)

        chain()
        e.I("s_cbranch_vccnz %s" % retry)
        e.label(back)
        e.begin_stub()
        e.label(retry)
        e.I("s_cmp_eq_u32 s%d, 0" % S_BUDGET)
        e.I("s_cbranch_scc1 %s" % back)
        e.I("s_sub_u32 s%d, s%d, 1" % (S_BUDGET, S_BUDGET))
        e.I("s_nop 4")
        reissue()
        e.drain_vm()
        chain()
        e.I("s_cbranch_vccnz %s" % retry)
        e.I("s_branch %s" % back)
        e.end_stub()

    def ws_load(self, dst, n, voff, soff, imm=0):
        op = {1: "dword", 2: "dwordx2", 4: "dwordx4"}[n]
        return self.e.vm("buffer_load_%s %s, v%d, %s, s%d offen offset:%d sc1" % (op, dst, voff, sr(S_WS, 4), soff, imm))

    def ws_store(self, src, n, voff, soff, imm=0):
        op = {1: "dword", 2: "dwordx2", 4: "dwordx4"}[n]
        return self.e.vm("buffer_store_%s %s, v%d, %s, s%d offen offset:%d sc1" % (op, src, voff, sr(S_WS, 4), soff, imm))

    def sadd(self, dst, base, const):
        self.e.I("s_add_u32 s%d, s%d, 0x%x" % (dst, base, const))

    def off_kv(self, dst, l):
        e = self.e
        e.I("s_lshl_b32 s%d, s%d, 18" % (dst, S_HP))
        e.I("s_lshl_b32 s%d, s%d, 12" % (S_T3, S_RB))
        e.I("s_add_u32 s%d, s%d, s%d" % (dst, dst, S_T3))
        e.I("s_lshl_b32 s%d, s%d, 10" % (S_T3, S_WAVE))
        e.I("s_add_u32 s%d, s%d, s%d" % (dst, dst, S_T3))
        if WS_KV[l]:
            self.sadd(dst, dst, WS_KV[l])

    def off_o(self, dst, l):
        e = self.e
        e.I("s_lshl_b32 s%d, s%d, 2" % (dst, S_RB))
        e.I("s_add_u32 s%d, s%d, s%d" % (dst, dst, S_WAVE))
        e.I("s_lshl_b32 s%d, s%d, 15" % (dst, dst))
        e.I("s_lshl_b32 s%d, s%d, 11" % (S_T3, S_HP))
        e.I("s_add_u32 s%d, s%d, s%d" % (dst, dst, S_T3))
        self.sadd(dst, dst, WS_O[l])

    def off_st(self, dst, l):
        e = self.e
        e.I("s_lshl_b32 s%d, s%d, 3" % (dst, S_SB))
        e.I("s_add_u32 s%d, s%d, s%d" % (dst, dst, S_J))
        e.I("s_lshl_b32 s%d, s%d, 1" % (dst, dst))
        e.I("s_add_u32 s%d, s%d, s%d" % (dst, dst, S_KH))
        e.I("s_lshl_b32 s%d, s%d, 9" % (dst, dst))
        e.I("s_lshl_b32 s%d, s%d, 8" % (S_T3, S_SH))
        e.I("s_add_u32 s%d, s%d, s%d" % (dst, dst, S_T3))
        self.sadd(dst, dst, WS_ST[l])

    def off_h(self, dst, l):
        e = self.e
        e.I("s_lshl_b32 s%d, s%d, 6" % (dst, S_J))
        e.I("s_lshl_b32 s%d, s%d, 1" % (S_T3, S_SB))
        e.I("s_add_u32 s%d, s%d, s%d" % (dst, dst, S_T3))
        e.I("s_add_u32 s%d, s%d, s%d" % (dst, dst, S_KH))
        e.I("s_lshl_b32 s%d, s%d, 12" % (dst, dst))
        e.I("s_lshl_b32 s%d, s%d, 11" % (S_T3, S_SH))
        e.I("s_add_u32 s%d, s%d, s%d" % (dst, dst, S_T3))
        self.sadd(dst, dst, WS_H[l])

    def off_u(self, dst, l):
        e = self.e
        e.I("s_lshl_b32 s%d, s%d, 1" % (dst, S_J4))
        e.I("s_add_u32 s%d, s%d, s%d" % (dst, dst, S_KH))
        e.I("s_mul_i32 s%d, s%d, 96" % (dst, dst))
        e.I("s_mul_i32 s%d, s%d, 3" % (S_T3, S_T))
        e.I("s_add_u32 s%d, s%d, s%d" % (dst, dst, S_T3))
        e.I("s_lshl_b32 s%d, s%d, 10" % (dst, dst))
        e.I("s_lshl_b32 s%d, s%d, 9" % (S_T3, S_SH))
        e.I("s_add_u32 s%d, s%d, s%d" % (dst, dst, S_T3))
        self.sadd(dst, dst, WS_U[l])

    def off_x0(self, dst):
        e = self.e
        e.I("s_lshl_b32 s%d, s%d, 1" % (dst, S_SB))
        e.I("s_add_u32 s%d, s%d, s%d" % (dst, dst, S_SH))
        e.I("s_lshl_b32 s%d, s%d, 5" % (dst, dst))
        e.I("s_lshl_b32 s%d, s%d, 2" % (S_T3, S_J))
        e.I("s_add_u32 s%d, s%d, s%d" % (dst, dst, S_T3))
        e.I("s_lshl_b32 s%d, s%d, 1" % (S_T3, S_KH))
        e.I("s_add_u32 s%d, s%d, s%d" % (dst, dst, S_T3))
        e.I("s_lshl_b32 s%d, s%d, 10" % (dst, dst))
        self.sadd(dst, dst, WS_X0)

    def poison(self, items, vm1, v16, v8):
        e = self.e
        for k in range(4):
            e.I("v_mov_b32 v%d, -1" % (vm1 + k))
        e.I("v_lshlrev_b32 v%d, 4, v%d" % (v16, V_LANE))
        e.I("v_lshlrev_b32 v%d, 3, v%d" % (v8, V_LANE))
        for kind, l in items:
            if kind == "kv":
                self.off_kv(S_T0, l)
                for p in range(4):
                    self.sadd(S_T1, S_T0, p * 65536)
                    self.ws_store(vr(vm1, 4), 4, v16, S_T1)
            elif kind == "o":
                self.off_o(S_T0, l)
                self.ws_store(vr(vm1, 4), 4, v16, S_T0, 0)
                self.ws_store(vr(vm1, 4), 4, v16, S_T0, 1024)
            elif kind == "st":
                self.off_st(S_T0, l)
                e.I("v_and_b32 v%d, 31, v%d" % (v8 + 1, V_LANE))
                e.I("v_lshlrev_b32 v%d, 3, v%d" % (v8 + 1, v8 + 1))
                self.ws_store(vr(vm1, 2), 2, v8 + 1, S_T0)
            elif kind == "h":
                self.off_h(S_T0, l)
                self.ws_store(vr(vm1, 4), 4, v16, S_T0, 0)
                self.ws_store(vr(vm1, 4), 4, v16, S_T0, 1024)
            elif kind == "u":
                self.off_u(S_T0, l)
                for fs in range(3):
                    self.ws_store(vr(vm1, 2), 2, v8, S_T0, fs * 1024)
            elif kind == "x0":
                self.off_x0(S_T0)
                self.ws_store(vr(vm1, 4), 4, v16, S_T0, 0)
                self.ws_store(vr(vm1, 4), 4, v16, S_T0, 1024)

    def prologue(self):
        e = self.e
        e.I("s_cmp_ge_u32 s2, 256")
        e.I("s_cbranch_scc1 L_END")
        sizes = {S_X: (0, 2097152), S_WQKV: (8, 1572864), S_WO: (16, 524288), S_W1: (32, 5636096), S_B1: (40, 2752),
                 S_W2: (48, 5636096), S_B2: (56, 4096), S_OUT: (64, 2097152), S_DBG: (72, 256), S_WS: (80, WS_BYTES)}
        for s, (off, _) in sizes.items():
            e.I("s_load_dwordx2 %s, s[0:1], %d" % (sr(s, 2), off))
        for s, (_, n) in sizes.items():
            e.I("s_mov_b32 s%d, 0x%x" % (s + 2, n))
            e.I("s_mov_b32 s%d, 0x00020000" % (s + 3))
        e.I("v_lshrrev_b32 v1, 6, v0")
        e.I("v_and_b32 v0, 63, v0")
        e.I("v_readfirstlane_b32 s%d, v1" % S_WAVE)
        e.I("s_and_b32 s%d, s2, 7" % S_T0)
        e.I("s_lshr_b32 s%d, s2, 3" % S_T1)
        e.I("s_lshr_b32 s%d, s%d, 4" % (S_T2, S_T1))
        e.I("s_lshl_b32 s%d, s%d, 1" % (S_RB, S_T0))
        e.I("s_add_u32 s%d, s%d, s%d" % (S_RB, S_RB, S_T2))
        e.I("s_and_b32 s%d, s%d, 15" % (S_HP, S_T1))
        e.I("s_lshr_b32 s%d, s%d, 3" % (S_T2, S_T1))
        e.I("s_lshl_b32 s%d, s%d, 2" % (S_SB, S_T0))
        e.I("s_add_u32 s%d, s%d, s%d" % (S_SB, S_SB, S_T2))
        e.I("s_and_b32 s%d, s%d, 7" % (S_J, S_T1))
        e.I("s_and_b32 s%d, s%d, 1" % (S_T2, S_T0))
        e.I("s_lshl_b32 s%d, s%d, 2" % (S_J4, S_T2))
        e.I("s_and_b32 s%d, s%d, 3" % (S_T2, S_T1))
        e.I("s_add_u32 s%d, s%d, s%d" % (S_J4, S_J4, S_T2))
        e.I("s_lshr_b32 s%d, s%d, 1" % (S_T, S_T0))
        e.I("s_lshl_b32 s%d, s%d, 3" % (S_T, S_T))
        e.I("s_lshr_b32 s%d, s%d, 2" % (S_T2, S_T1))
        e.I("s_add_u32 s%d, s%d, s%d" % (S_T, S_T, S_T2))
        e.I("s_lshr_b32 s%d, s%d, 1" % (S_KH, S_WAVE))
        e.I("s_and_b32 s%d, s%d, 1" % (S_SH, S_WAVE))
        e.I("s_lshl_b32 s%d, s%d, 2" % (S_T2, S_RB))
        e.I("s_add_u32 s%d, s%d, s%d" % (S_T2, S_T2, S_WAVE))
        e.I("s_min_u32 s%d, s%d, 8" % (S_T2, S_T2))
        e.I("s_sub_u32 s%d, 8, s%d" % (S_NSKIP, S_T2))
        e.I("s_mov_b32 s%d, %d" % (S_BUDGET, self.o.budget))
        e.I("s_mov_b32 s%d, 0x3f803f80" % S_ONES)
        for r in range(16):
            m = 0
            for l in range(64):
                row = 8 * (r >> 2) + 4 * (l >> 5) + (r & 3)
                if row <= (l & 31):
                    m |= 1 << l
            e.I("s_mov_b32 s%d, 0x%x" % (S_MASK + 2 * r, m & 0xFFFFFFFF))
            e.I("s_mov_b32 s%d, 0x%x" % (S_MASK + 2 * r + 1, m >> 32))
        e.I("s_waitcnt lgkmcnt(0)")

    def dma_w(self, vt):
        e = self.e
        for q in range(3):
            p, row, c = vt + 3, vt + 4, vt + 5
            e.I("v_add_u32 v%d, %d, v%d" % (p, 64 * q, V_LANE))
            e.I("v_mul_u32_u24 v%d, 171, v%d" % (row, p))
            e.I("v_lshrrev_b32 v%d, 11, v%d" % (row, row))
            e.I("v_mul_u32_u24 v%d, 12, v%d" % (c, row))
            e.I("v_sub_u32 v%d, v%d, v%d" % (c, p, c))
            e.I("v_mul_u32_u24 v%d, 0xc00, v%d" % (vt + q, row))
            e.I("v_lshrrev_b32 v%d, 2, v%d" % (p, c))
            e.I("v_lshlrev_b32 v%d, 10, v%d" % (p, p))
            e.I("v_add_u32 v%d, v%d, v%d" % (vt + q, vt + q, p))
            e.I("v_and_b32 v%d, 3, v%d" % (c, c))
            e.I("v_lshlrev_b32 v%d, 4, v%d" % (c, c))
            e.I("v_add_u32 v%d, v%d, v%d" % (vt + q, vt + q, c))
        e.I("s_mul_i32 s%d, s%d, %d" % (S_T0, S_WAVE, 128 * 3072))
        e.I("s_lshl_b32 s%d, s%d, 6" % (S_T1, S_HP))
        e.I("s_add_u32 s%d, s%d, s%d" % (S_T0, S_T0, S_T1))
        e.I("s_mul_i32 s%d, s%d, %d" % (S_T1, S_WAVE, 8 * 3072))
        last = None
        for grp in range(8):
            self.sadd(S_T2, S_T0, grp * 16 * 3072)
            for q in range(3):
                e.I("s_add_u32 m0, s%d, %d" % (S_T1, L_W + grp * 3072 + q * 1024))
                e.I("s_nop 0")
                last = e.vm("buffer_load_dwordx4 v%d, %s, s%d offen lds" % (vt + q, sr(S_WQKV, 4), S_T2))
        return last

    def dma_wo(self, vt):
        e = self.e
        e.I("v_lshrrev_b32 v%d, 3, v%d" % (vt, V_LANE))
        e.I("v_lshlrev_b32 v%d, 10, v%d" % (vt, vt))
        e.I("v_and_b32 v%d, 7, v%d" % (vt + 1, V_LANE))
        e.I("v_lshrrev_b32 v%d, 4, v%d" % (vt + 2, V_LANE))
        e.I("v_and_b32 v%d, 1, v%d" % (vt + 2, vt + 2))
        e.I("v_lshlrev_b32 v%d, 2, v%d" % (vt + 2, vt + 2))
        e.I("v_xor_b32 v%d, v%d, v%d" % (vt + 1, vt + 1, vt + 2))
        e.I("v_lshlrev_b32 v%d, 4, v%d" % (vt + 1, vt + 1))
        e.I("v_add_u32 v%d, v%d, v%d" % (vt, vt, vt + 1))
        e.I("s_lshl_b32 s%d, s%d, 17" % (S_T0, S_WAVE))
        e.I("s_lshl_b32 s%d, s%d, 7" % (S_T1, S_J))
        e.I("s_add_u32 s%d, s%d, s%d" % (S_T0, S_T0, S_T1))
        e.I("s_lshl_b32 s%d, s%d, 14" % (S_T1, S_WAVE))
        last = None
        for i in range(16):
            self.sadd(S_T2, S_T0, i * 8192)
            e.I("s_add_u32 m0, s%d, %d" % (S_T1, L_WO + i * 1024))
            e.I("s_nop 0")
            last = e.vm("buffer_load_dwordx4 v%d, %s, s%d offen lds" % (vt, sr(S_WO, 4), S_T2))
        return last

    def load_w2_raw(self, vt, steps):
        e = self.e
        e.I("v_lshrrev_b32 v%d, 3, v%d" % (vt, V_LANE))
        e.I("v_lshlrev_b32 v%d, 12, v%d" % (vt, vt))
        e.I("v_and_b32 v%d, 7, v%d" % (vt + 1, V_LANE))
        e.I("v_lshlrev_b32 v%d, 4, v%d" % (vt + 1, vt + 1))
        e.I("v_add_u32 v%d, v%d, v%d" % (vt, vt, vt + 1))
        e.I("s_mul_i32 s%d, s%d, %d" % (S_T0, S_WAVE, 22 * 16 * 4096))
        e.I("s_lshl_b32 s%d, s%d, 7" % (S_T1, S_SB))
        e.I("s_add_u32 s%d, s%d, s%d" % (S_T0, S_T0, S_T1))
        ids = {}
        for i in steps:
            for h in range(2):
                self.sadd(S_T1, S_T0, (16 * i + 8 * h) * 4096)
                ids[(i, h)] = e.vm("buffer_load_dwordx4 %s, v%d, %s, s%d offen"
                                   % (w2_reg(i, 4 * h, 4), vt, sr(S_W2, 4), S_T1))
        return ids

    def transpose_w2(self, vt, steps, ids):
        e = self.e
        wa, ra = vt, vt + 1
        e.I("v_lshlrev_b32 v%d, 4, v%d" % (wa, V_LANE))
        e.I("s_mul_i32 s%d, s%d, 3072" % (S_T0, S_WAVE))
        self.sadd(S_T0, S_T0, L_TRS)
        e.I("v_add_u32 v%d, s%d, v%d" % (wa, S_T0, wa))
        t = vt + 3
        e.I("v_lshrrev_b32 v%d, 5, v%d" % (ra, V_LANE))
        e.I("v_lshlrev_b32 v%d, 3, v%d" % (ra, ra))
        e.I("v_bfe_u32 v%d, v%d, 2, 2" % (t, V_LANE))
        e.I("v_add_u32 v%d, v%d, v%d" % (ra, ra, t))
        e.I("v_lshlrev_b32 v%d, 7, v%d" % (ra, ra))
        e.I("v_bfe_u32 v%d, v%d, 4, 1" % (t, V_LANE))
        e.I("v_lshlrev_b32 v%d, 5, v%d" % (t, t))
        e.I("v_add_u32 v%d, v%d, v%d" % (ra, ra, t))
        e.I("v_and_b32 v%d, 3, v%d" % (t, V_LANE))
        e.I("v_lshlrev_b32 v%d, 3, v%d" % (t, t))
        e.I("v_add_u32 v%d, v%d, v%d" % (ra, ra, t))
        e.I("v_add_u32 v%d, s%d, v%d" % (ra, S_T0, ra))
        e.I("s_lshl_b32 s%d, s%d, 6" % (S_T1, S_SH))
        e.I("s_xor_b32 s%d, s%d, 64" % (S_T2, S_T1))
        e.I("v_add_u32 v%d, s%d, v%d" % (ra + 1, S_T2, ra))
        e.I("v_add_u32 v%d, s%d, v%d" % (ra, S_T1, ra))
        for i in steps:
            e.wait_vm(ids[(i, 1)])
            e.ds("ds_write_b128 v%d, %s offset:0" % (wa, w2_reg(i, 0, 4)))
            e.ds("ds_write_b128 v%d, %s offset:1024" % (wa, w2_reg(i, 4, 4)))
            for b in range(2):
                e.ds("ds_read_b64_tr_b16 %s, v%d offset:0" % (w2_reg(i, 4 * b, 2), ra + b))
                last = e.ds("ds_read_b64_tr_b16 %s, v%d offset:512" % (w2_reg(i, 4 * b + 2, 2), ra + b))
            e.wait_ds(e.dsq[max(0, len(e.dsq) - 7)])
        e.drain_ds()

    def load_w1_raw(self, vt, steps):
        e = self.e
        for q in range(3):
            p, row, c = vt + 3, vt + 4, vt + 5
            e.I("v_add_u32 v%d, %d, v%d" % (p, 64 * q, V_LANE))
            e.I("v_mul_u32_u24 v%d, 0x156, v%d" % (row, p))
            e.I("v_lshrrev_b32 v%d, 11, v%d" % (row, row))
            e.I("v_mul_u32_u24 v%d, 6, v%d" % (c, row))
            e.I("v_sub_u32 v%d, v%d, v%d" % (c, p, c))
            e.I("v_mul_u32_u24 v%d, 0xac0, v%d" % (vt + q, row))
            e.I("v_lshlrev_b32 v%d, 4, v%d" % (c, c))
            e.I("v_add_u32 v%d, v%d, v%d" % (vt + q, vt + q, c))
        e.I("s_mul_i32 s%d, s%d, %d" % (S_T0, S_WAVE, 512 * 2752))
        e.I("s_mul_i32 s%d, s%d, 96" % (S_T1, S_T))
        e.I("s_add_u32 s%d, s%d, s%d" % (S_T0, S_T0, S_T1))
        ids = {}
        for i in steps:
            self.sadd(S_T1, S_T0, 32 * i * 2752)
            for q in range(3):
                ids[(i, q)] = e.vm("buffer_load_dwordx4 %s, v%d, %s, s%d offen"
                                   % (w1_reg(i, 4 * q, 4), vt + q, sr(S_W1, 4), S_T1))
        return ids

    def transpose_w1(self, vt, steps, ids):
        e = self.e
        wa, ra, t = vt, vt + 1, vt + 2
        e.I("v_lshlrev_b32 v%d, 4, v%d" % (wa, V_LANE))
        e.I("s_mul_i32 s%d, s%d, 3072" % (S_T0, S_WAVE))
        self.sadd(S_T0, S_T0, L_TRS)
        e.I("v_add_u32 v%d, s%d, v%d" % (wa, S_T0, wa))
        e.I("v_lshrrev_b32 v%d, 4, v%d" % (ra, V_LANE))
        e.I("v_lshlrev_b32 v%d, 3, v%d" % (ra, ra))
        e.I("v_bfe_u32 v%d, v%d, 2, 2" % (t, V_LANE))
        e.I("v_add_u32 v%d, v%d, v%d" % (ra, ra, t))
        e.I("v_mul_u32_u24 v%d, 96, v%d" % (ra, ra))
        e.I("v_and_b32 v%d, 3, v%d" % (t, V_LANE))
        e.I("v_lshlrev_b32 v%d, 3, v%d" % (t, t))
        e.I("v_add_u32 v%d, v%d, v%d" % (ra, ra, t))
        e.I("v_add_u32 v%d, s%d, v%d" % (ra, S_T0, ra))
        for i in steps:
            e.wait_vm(ids[(i, 2)])
            for q in range(3):
                e.ds("ds_write_b128 v%d, %s offset:%d" % (wa, w1_reg(i, 4 * q, 4), q * 1024))
            for ft in range(3):
                e.ds("ds_read_b64_tr_b16 %s, v%d offset:%d" % (w1_reg(i, 4 * ft, 2), ra, ft * 32))
                e.ds("ds_read_b64_tr_b16 %s, v%d offset:%d" % (w1_reg(i, 4 * ft + 2, 2), ra, ft * 32 + 384))
            e.wait_ds(e.dsq[max(0, len(e.dsq) - 10)])
        e.drain_ds()

    def p1(self, l):
        e = self.e
        ACC = VT
        XF = ACC + 48
        R = 12
        WF = XF + 4 * R
        ST = WF + 24
        CS = ST + 4
        VX, VW0, VW1, TMP = CS + 3, CS + 4, CS + 5, CS + 6
        assert TMP + 1 <= 144, TMP
        wdone = None
        if l == 0:
            e.I("s_getpc_b64 %s" % sr(S_PC, 2))
            e.label("L_PC")
            e.I("s_sub_u32 s%d, s%d, L_PC-%s" % (S_CODE, S_PC, KNAME))
            e.I("s_subb_u32 s%d, s%d, 0" % (S_CODE + 1, S_PC + 1))
            e.I("s_mov_b32 s%d, L_CODE_END-%s" % (S_CODE + 2, KNAME))
            e.I("s_mov_b32 s%d, 0x00020000" % (S_CODE + 3))
            e.I("s_lshr_b32 s%d, s2, 3" % S_T0)
            e.I("s_lshl_b32 s%d, s%d, 2" % (S_T0, S_T0))
            e.I("s_add_u32 s%d, s%d, s%d" % (S_T0, S_T0, S_WAVE))
            e.I("s_lshl_b32 s%d, s%d, 13" % (S_T0, S_T0))
            e.I("v_lshlrev_b32 v%d, 7, v%d" % (TMP, V_LANE))
            e.vm("buffer_load_dword v%d, v%d, %s, s%d offen" % (TMP, TMP, sr(S_CODE, 4), S_T0))
            self.poison([("kv", 0), ("o", 0), ("st", 0), ("h", 0)], ACC, ACC + 4, ACC + 5)
            wdone = self.dma_w(XF)
        t = TMP
        if l == 0:
            e.I("v_and_b32 v%d, 31, v%d" % (VX, V_LANE))
            e.I("s_lshl_b32 s%d, s%d, 7" % (S_T0, S_RB))
            e.I("s_lshl_b32 s%d, s%d, 5" % (S_T1, S_WAVE))
            e.I("s_add_u32 s%d, s%d, s%d" % (S_T0, S_T0, S_T1))
            e.I("v_add_u32 v%d, s%d, v%d" % (VX, S_T0, VX))
            e.I("v_lshlrev_b32 v%d, 10, v%d" % (VX, VX))
            e.I("v_lshrrev_b32 v%d, 5, v%d" % (t, V_LANE))
            e.I("v_lshlrev_b32 v%d, 6, v%d" % (t, t))
            e.I("v_add_u32 v%d, v%d, v%d" % (VX, VX, t))
            hi_rows = 32
        else:
            e.I("v_lshlrev_b32 v%d, 4, v%d" % (VX, V_LANE))
            e.I("s_lshl_b32 s%d, s%d, 2" % (S_B0, S_RB))
            e.I("s_add_u32 s%d, s%d, s%d" % (S_B0, S_B0, S_WAVE))
            e.I("s_lshl_b32 s%d, s%d, 15" % (S_B0, S_B0))
            self.sadd(S_B0, S_B0, WS_X0)
            hi_rows = 4
        e.I("v_lshrrev_b32 v%d, 5, v%d" % (VW0, V_LANE))
        e.I("v_mul_u32_u24 v%d, %d, v%d" % (VW0, hi_rows, VW0))
        e.I("v_bfe_u32 v%d, v%d, 2, 2" % (t, V_LANE))
        e.I("v_add_u32 v%d, v%d, v%d" % (VW0, VW0, t))
        e.I("v_mul_u32_u24 v%d, 192, v%d" % (VW0, VW0))
        e.I("v_bfe_u32 v%d, v%d, 4, 1" % (t, V_LANE))
        e.I("v_lshlrev_b32 v%d, 5, v%d" % (t, t))
        e.I("v_add_u32 v%d, v%d, v%d" % (VW0, VW0, t))
        e.I("v_and_b32 v%d, 3, v%d" % (t, V_LANE))
        e.I("v_lshlrev_b32 v%d, 3, v%d" % (t, t))
        e.I("v_add_u32 v%d, v%d, v%d" % (VW0, VW0, t))
        e.I("v_add_u32 v%d, 0xc000, v%d" % (VW1, VW0))

        def xload(kk):
            d = vr(XF + 4 * (kk % R), 4)
            if l == 0:
                return e.vm("buffer_load_dwordx4 %s, v%d, %s, 0 offen offset:%d"
                            % (d, VX, sr(S_X, 4), (kk >> 2) * 128 + (kk & 3) * 16))
            self.sadd(S_T0, S_B0, (kk >> 2) * 4096)
            return self.ws_load(d, 4, VX, S_T0, (kk & 3) * 1024)

        def wread(kk):
            ids = []
            if l == 0:
                c, jq = kk >> 2, kk & 3
                rows, second = (64 * (c & 3) + 8 * jq), 4 * 192
                base = VW0 if c < 4 else VW1
            else:
                rows, second = 16 * (kk & 15), 8 * 192
                base = VW0 if kk < 16 else VW1
            for p in range(3):
                d = WF + 12 * (kk & 1) + 4 * p
                off = L_W + rows * 192 + p * 64
                e.ds("ds_read_b64_tr_b16 %s, v%d offset:%d" % (vr(d, 2), base, off))
                ids.append(e.ds("ds_read_b64_tr_b16 %s, v%d offset:%d" % (vr(d + 2, 2), base, off + second)))
            return ids[-1]

        xid = {}
        for kk in range(R):
            xid[kk] = xload(kk)
        if l == 0:
            e.I("v_and_b32 v%d, 31, v%d" % (t, V_LANE))
            e.I("s_lshl_b32 s%d, s%d, 6" % (S_T0, S_SB))
            e.I("s_lshl_b32 s%d, s%d, 5" % (S_T1, S_SH))
            e.I("s_add_u32 s%d, s%d, s%d" % (S_T0, S_T0, S_T1))
            e.I("v_add_u32 v%d, s%d, v%d" % (t, S_T0, t))
            e.I("v_lshlrev_b32 v%d, 1, v%d" % (ST, t))
            e.vm("buffer_load_ushort v%d, v%d, %s, 0 offen" % (V_B2, ST, sr(S_B2, 4)))
            e.I("v_lshlrev_b32 v%d, 10, v%d" % (t, t))
            e.I("v_lshrrev_b32 v%d, 5, v%d" % (ST + 1, V_LANE))
            e.I("v_lshlrev_b32 v%d, 3, v%d" % (ST + 1, ST + 1))
            e.I("v_add_u32 v%d, v%d, v%d" % (t, t, ST + 1))
            e.I("s_lshl_b32 s%d, s%d, 7" % (S_T0, S_J))
            e.I("s_lshl_b32 s%d, s%d, 6" % (S_T1, S_KH))
            e.I("s_add_u32 s%d, s%d, s%d" % (S_T0, S_T0, S_T1))
            for q in range(4):
                resid = e.vm("buffer_load_dwordx2 %s, v%d, %s, s%d offen offset:%d"
                             % (vr(V_XR + 2 * q, 2), t, sr(S_X, 4), S_T0, 16 * q))
            e.wait_vm(wdone)
            e.I("s_barrier")
            skip = e.new_label("noinit")
            e.I("s_cmp_lg_u32 s%d, 0" % S_WAVE)
            e.I("s_cbranch_scc1 %s" % skip)
            e.I("v_mov_b32 v%d, s2" % t)
            e.I("v_mov_b32 v%d, 1" % (ST + 1))
            e.I("buffer_store_byte v%d, v%d, %s, 0 offen sc1" % (ST + 1, t, sr(S_DBG, 4)))
            e.label(skip)
        for k in range(48):
            e.I("v_mov_b32 v%d, 0" % (ACC + k))
        for k in range(4):
            e.I("v_mov_b32 v%d, 0" % (ST + k))
        if l == 0:
            for k in range(3):
                e.I("v_mov_b32 v%d, 0" % (CS + k))
        wid = {0: wread(0)}
        for kk in range(32):
            if l == 1 and kk % 2 == 0:
                e.wait_vm(xid[kk + 1])
                regs = [XF + 4 * (kk % R) + k for k in range(4)] + [XF + 4 * ((kk + 1) % R) + k for k in range(4)]

                def reissue(kk=kk):
                    for k2 in range(kk, min(kk + R, 32)):
                        xload(k2)
                self.check(regs, reissue, "p1", TMP)
            elif l == 0:
                e.wait_vm(xid[kk])
            if kk + 1 < 32:
                wid[kk + 1] = wread(kk + 1)
            e.wait_ds(wid[kk])
            x = XF + 4 * (kk % R)
            w = WF + 12 * (kk & 1)
            dots = []
            for k in range(4):
                dots.append("v_dot2_f32_bf16 v%d, v%d, s%d, v%d" % (ST + (k & 1), x + k, S_ONES, ST + (k & 1)))
                dots.append("v_dot2_f32_bf16 v%d, v%d, v%d, v%d" % (ST + 2 + (k & 1), x + k, x + k, ST + 2 + (k & 1)))
            for p in range(3):
                e.I("v_mfma_f32_32x32x16_bf16 %s, %s, %s, %s" % (vr(ACC + 16 * p, 16), vr(w + 4 * p, 4), vr(x, 4),
                                                                vr(ACC + 16 * p, 16)))
                for dd in dots[3 * p: 3 * p + 3] if p < 2 else dots[6:]:
                    e.I(dd)
            if l == 0:
                skip = e.new_label("cs")
                e.I("s_cmp_lg_u32 s%d, %d" % (S_WAVE, kk & 3))
                e.I("s_cbranch_scc1 %s" % skip)
                for k in range(4):
                    for p in range(3):
                        e.I("v_dot2_f32_bf16 v%d, v%d, s%d, v%d" % (CS + p, w + 4 * p + k, S_ONES, CS + p))
                e.label(skip)
            if kk + R < 32:
                xid[kk + R] = xload(kk + R)
        t0, t1, MU, RS, RQ = WF, WF + 1, WF + 2, WF + 3, WF + 4
        CSR = XF
        e.I("s_nop 3")
        if l == 0:
            for p in range(3):
                e.I("v_mov_b32 v%d, v%d" % (t0, CS + p))
                e.I("v_permlane32_swap_b32 v%d, v%d" % (CS + p, t0))
                e.I("v_add_f32 v%d, v%d, v%d" % (CS + p, CS + p, t0))
            e.I("v_and_b32 v%d, 31, v%d" % (t0, V_LANE))
            e.I("v_lshlrev_b32 v%d, 2, v%d" % (t0, t0))
            e.I("v_add_u32 v%d, 0x%x, v%d" % (t0, L_CSP, t0))
            e.I("s_mul_i32 s%d, s%d, 384" % (S_T0, S_WAVE))
            e.I("v_add_u32 v%d, s%d, v%d" % (t1, S_T0, t0))
            for p in range(3):
                e.ds("ds_write_b32 v%d, v%d offset:%d" % (t1, CS + p, p * 128))
        e.barrier()
        self.dma_wo(XF + 16)
        if l == 0:
            for wv in range(4):
                for p in range(3):
                    e.ds("ds_read_b32 v%d, v%d offset:%d" % (XF + 20 + wv * 3 + p, t0, wv * 384 + p * 128))
            e.drain_ds()
            for p in range(3):
                e.I("v_add_f32 v%d, v%d, v%d" % (XF + 20 + p, XF + 20 + p, XF + 23 + p))
                e.I("v_add_f32 v%d, v%d, v%d" % (XF + 26 + p, XF + 26 + p, XF + 29 + p))
                e.I("v_add_f32 v%d, v%d, v%d" % (XF + 20 + p, XF + 20 + p, XF + 26 + p))
                e.ds("ds_write_b32 v%d, v%d offset:%d" % (t0, XF + 20 + p, L_CS - L_CSP + p * 128))
            e.drain_ds()
        e.I("v_add_f32 v%d, v%d, v%d" % (ST, ST, ST + 1))
        e.I("v_add_f32 v%d, v%d, v%d" % (ST + 2, ST + 2, ST + 3))
        for s in (ST, ST + 2):
            e.I("v_mov_b32 v%d, v%d" % (t0, s))
            e.I("v_permlane32_swap_b32 v%d, v%d" % (s, t0))
            e.I("v_add_f32 v%d, v%d, v%d" % (s, s, t0))
        e.I("v_mul_f32 v%d, 0x%x, v%d" % (MU, f32(1.0 / 512), ST))
        e.I("v_mul_f32 v%d, 0x%x, v%d" % (t0, f32(1.0 / 512), ST + 2))
        e.I("v_fma_f32 v%d, -v%d, v%d, v%d" % (t0, MU, MU, t0))
        e.I("v_max_f32 v%d, 0, v%d" % (t0, t0))
        e.I("v_add_f32 v%d, 0x%x, v%d" % (t0, f32(1e-5), t0))
        e.I("v_rsq_f32 v%d, v%d" % (RS, t0))
        e.I("v_mul_f32 v%d, 0x%x, v%d" % (RQ, f32(SCALE_Q), RS))
        e.I("v_lshrrev_b32 v%d, 5, v%d" % (t1, V_LANE))
        e.I("v_lshlrev_b32 v%d, 4, v%d" % (t1, t1))
        e.I("v_add_u32 v%d, 0x%x, v%d" % (t1, L_CS, t1))
        QF = VT
        PK = WF + 8
        for p in range(3):
            for q in range(4):
                e.ds("ds_read_b128 %s, v%d offset:%d" % (vr(CSR + 4 * q, 4), t1, p * 128 + q * 32))
            e.drain_ds()
            sc = RQ if p == 0 else RS
            for r in range(16):
                e.I("v_fma_f32 v%d, -v%d, v%d, v%d" % (ACC + 16 * p + r, MU, CSR + r, ACC + 16 * p + r))
                e.I("v_mul_f32 v%d, v%d, v%d" % (ACC + 16 * p + r, ACC + 16 * p + r, sc))
            for r in range(8):
                dst = QF + r if p == 0 else PK + 8 * (p - 1) + r
                e.I("v_cvt_pk_bf16_f32 v%d, v%d, v%d" % (dst, ACC + 16 * p + 2 * r, ACC + 16 * p + 2 * r + 1))
        va, vk, vv = XF, XF + 1, XF + 2
        e.I("v_lshlrev_b32 v%d, 4, v%d" % (va, V_LANE))
        self.off_kv(S_T0, l)
        for p in range(4):
            self.sadd(S_T1, S_T0, p * 65536)
            self.ws_store(vr(PK + 4 * p, 4), 4, va, S_T1)
        e.I("s_add_u32 s%d, s%d, 8" % (S_T0, S_WAVE))
        e.I("s_mul_i32 s%d, s%d, %d" % (S_T0, S_T0, KVB))
        e.I("v_add_u32 v%d, s%d, v%d" % (vk, S_T0, va))
        self.v_lanepos(vv, vv + 1)
        e.I("v_add_u32 v%d, s%d, v%d" % (vv, S_T0, vv))
        for p in range(4):
            e.ds("ds_write_b128 v%d, %s offset:%d" % (vk if p < 2 else vv, vr(PK + 4 * p, 4), L_KV + p * KVP))
        for k in range(4):
            e.I("v_mov_b32 v%d, s%d" % (XF + 4 + k, S_ONES))
        e.ds("ds_write_b128 v%d, %s offset:%d" % (va, vr(XF + 4, 4), L_ONES))
        if l == 0:
            e.I("v_lshlrev_b32 v%d, 16, v%d" % (V_B2, V_B2))

    def v_lanepos(self, dst, tmp):
        e = self.e
        e.I("v_lshrrev_b32 v%d, 5, v%d" % (dst, V_LANE))
        e.I("v_mul_u32_u24 v%d, 576, v%d" % (dst, dst))
        e.I("v_and_b32 v%d, 31, v%d" % (tmp, V_LANE))
        e.I("v_lshlrev_b32 v%d, 4, v%d" % (tmp, tmp))
        e.I("v_add_u32 v%d, v%d, v%d" % (dst, dst, tmp))

    def p2(self, l):
        e = self.e
        QF = VT
        S = [18, 34]
        O, NEGM, P = 50, 66, 82
        KF = [90, 94]
        VF = [98, 106]
        M0, M1, T0, T1, NINF = 114, 115, 116, 117, 118
        VK, VV, VSTEP, VVB, VG = 120, 121, 122, 123, 124
        HALO = S[0]
        e.I("v_lshlrev_b32 v%d, 4, v%d" % (VG, V_LANE))
        e.I("s_lshl_b32 s%d, s%d, 2" % (S_B0, S_HP))
        e.I("s_add_u32 s%d, s%d, s%d" % (S_B0, S_B0, S_WAVE))
        e.I("s_lshl_b32 s%d, s%d, 16" % (S_B0, S_B0))
        if WS_KV[l]:
            self.sadd(S_B0, S_B0, WS_KV[l])
        e.I("s_lshl_b32 s%d, s%d, 2" % (S_B1X, S_RB))

        def halo_loads():
            for b in range(8):
                e.I("s_add_u32 s%d, s%d, %d" % (S_T0, S_B1X, b))
                e.I("s_max_u32 s%d, s%d, 8" % (S_T0, S_T0))
                e.I("s_sub_u32 s%d, s%d, 8" % (S_T0, S_T0))
                e.I("s_lshl_b32 s%d, s%d, 10" % (S_T0, S_T0))
                e.I("s_add_u32 s%d, s%d, s%d" % (S_T0, S_T0, S_B0))
                last = self.ws_load(vr(HALO + 4 * b, 4), 4, VG, S_T0)
            return last
        if l == 0:
            lp, dn = e.new_label("init"), e.new_label("initdone")
            e.I("v_lshlrev_b32 v%d, 2, v%d" % (T0, V_LANE))
            e.label(lp)
            e.I("buffer_load_dword v%d, v%d, %s, 0 offen sc1" % (T1, T0, sr(S_DBG, 4)))
            e.drain_vm()
            e.I("v_and_b32 v%d, 0x01010101, v%d" % (T1, T1))
            e.I("v_cmp_ne_u32 vcc, 0x01010101, v%d" % T1)
            e.I("s_cbranch_vccz %s" % dn)
            e.I("s_cmp_eq_u32 s%d, 0" % S_BUDGET)
            e.I("s_cbranch_scc1 %s" % dn)
            e.I("s_sub_u32 s%d, s%d, 1" % (S_BUDGET, S_BUDGET))
            e.I("s_branch %s" % lp)
            e.label(dn)
        last = halo_loads()
        e.wait_vm(last)
        self.check([HALO + k for k in range(32)], halo_loads, "halo", T0)
        self.v_lanepos(VV, T0)
        e.I("s_cmp_lt_u32 s%d, 2" % S_WAVE)
        e.I("s_cselect_b64 vcc, -1, 0")
        e.I("v_cndmask_b32 v%d, v%d, v%d, vcc" % (T1, VV, VG))
        e.I("s_mul_i32 s%d, s%d, %d" % (S_T0, S_WAVE, KVP))
        e.I("v_add_u32 v%d, s%d, v%d" % (T1, S_T0, T1))
        for b in range(8):
            e.ds("ds_write_b128 v%d, %s offset:%d" % (T1, vr(HALO + 4 * b, 4), L_KV + b * KVB))
        if l == 0:
            self.poison([("u", 0), ("x0", 0), ("kv", 1), ("o", 1), ("st", 1), ("h", 1), ("u", 1)], 126, 130, 131)
        e.barrier()
        self.stamp("P2 halo done L%d" % l)
        e.I("s_mul_i32 s%d, s%d, %d" % (S_B1X, S_WAVE, KVB))
        e.I("v_add_u32 v%d, s%d, v%d" % (VK, S_B1X, VG))
        e.I("v_bfe_u32 v%d, v%d, 1, 1" % (VVB, V_LANE))
        e.I("v_mul_u32_u24 v%d, 576, v%d" % (VVB, VVB))
        e.I("v_lshrrev_b32 v%d, 5, v%d" % (T0, V_LANE))
        e.I("v_lshlrev_b32 v%d, 2, v%d" % (T0, T0))
        e.I("v_bfe_u32 v%d, v%d, 2, 2" % (T1, V_LANE))
        e.I("v_add_u32 v%d, v%d, v%d" % (T0, T0, T1))
        e.I("v_lshlrev_b32 v%d, 4, v%d" % (T0, T0))
        e.I("v_add_u32 v%d, v%d, v%d" % (VVB, VVB, T0))
        e.I("v_and_b32 v%d, 1, v%d" % (T0, V_LANE))
        e.I("v_lshlrev_b32 v%d, 3, v%d" % (T0, T0))
        e.I("v_add_u32 v%d, v%d, v%d" % (VVB, VVB, T0))
        e.I("s_mul_i32 s%d, s%d, %d" % (S_T0, S_NSKIP, KVB))
        e.I("s_add_u32 s%d, s%d, s%d" % (S_T0, S_T0, S_B1X))
        e.I("s_add_u32 s%d, s%d, %d" % (S_T0, S_T0, L_KV + 2 * KVP))
        e.I("v_add_u32 v%d, s%d, v%d" % (VVB, S_T0, VVB))
        e.I("v_bfe_u32 v%d, v%d, 4, 1" % (T0, V_LANE))
        e.I("v_cmp_eq_u32 vcc, 1, v%d" % T0)
        e.I("v_mov_b32 v%d, %d" % (T1, L_ONES))
        e.I("v_cndmask_b32 v%d, v%d, v%d, vcc" % (VVB, VVB, T1))
        e.I("v_mov_b32 v%d, %d" % (T0, KVB))
        e.I("v_mov_b32 v%d, 0" % T1)
        e.I("v_cndmask_b32 v%d, v%d, v%d, vcc" % (VSTEP, T0, T1))
        e.I("v_mov_b32 v%d, 0x%x" % (NINF, NEG_INF))

        def kread(h, jj):
            return e.ds("ds_read_b128 %s, v%d offset:%d" % (vr(KF[jj & 1], 4), VK, L_KV + h * KVP + jj * KVB))

        def vread(jj):
            d = VF[jj & 1]
            for k in range(4):
                last = e.ds("ds_read_b64_tr_b16 %s, v%d offset:%d" % (vr(d + 2 * k, 2), VV, 128 * k))
            return last

        def qk(h, jj, c):
            e.I("v_mfma_f32_32x32x16_bf16 %s, %s, %s, %s" % (vr(S[jj & 1], 16), vr(KF[jj & 1], 4), vr(QF + 4 * h, 4), c))

        def mask(jj):
            s = S[jj & 1]
            for r in range(16):
                if jj == 8:
                    e.I("v_cndmask_b32 v%d, v%d, v%d, %s" % (s + r, NINF, s + r, sr(S_MASK + 2 * r, 2)))
                else:
                    e.I("v_cndmask_b32 v%d, v%d, v%d, %s" % (s + r, s + r, NINF, sr(S_MASK + 2 * r, 2)))

        def dispatch(labels):
            for en in range(1, 9):
                e.I("s_cmp_eq_u32 s%d, %d" % (S_NSKIP, en))
                e.I("s_cbranch_scc1 %s" % labels[en])

        for h in range(2):
            e.I("v_mov_b32 v%d, v%d" % (M0, NINF))
            e.I("v_mov_b32 v%d, v%d" % (M1, NINF))
            stubs = [e.new_label("a1s") for _ in range(9)]
            body = [e.new_label("a1b") for _ in range(9)]
            dispatch(stubs)
            for en in range(9):
                if en:
                    e.begin_stub()
                    e.label(stubs[en])
                k0 = kread(h, en)
                if en < 8:
                    kread(h, en + 1)
                e.wait_ds(k0)
                qk(h, en, "0")
                e.I("s_nop 7")
                e.I("s_nop 3")
                if en:
                    e.I("s_branch %s" % body[en])
                    e.end_stub()
            for jj in range(9):
                e.label(body[jj])
                if jj < 8:
                    e.drain_ds()
                    qk(h, jj + 1, "0")
                    if jj + 2 <= 8:
                        kread(h, jj + 2)
                s = S[jj & 1]
                if jj in (0, 8):
                    mask(jj)
                for r in range(0, 16, 4):
                    e.I("v_max3_f32 v%d, v%d, v%d, v%d" % (M0, M0, s + r, s + r + 1))
                    e.I("v_max3_f32 v%d, v%d, v%d, v%d" % (M1, M1, s + r + 2, s + r + 3))
            e.drain_ds()
            e.I("v_max_f32 v%d, v%d, v%d" % (M0, M0, M1))
            e.I("v_mov_b32 v%d, v%d" % (T0, M0))
            e.I("v_permlane32_swap_b32 v%d, v%d" % (M0, T0))
            e.I("v_max_f32 v%d, v%d, v%d" % (M0, M0, T0))
            for r in range(16):
                e.I("v_mul_f32 v%d, -1.0, v%d" % (NEGM + r, M0))
            for r in range(16):
                e.I("v_mov_b32 v%d, 0" % (O + r))
            e.I("v_mov_b32 v%d, v%d" % (VV, VVB))
            if h == 1:
                e.I("v_mov_b32 v%d, %d" % (T0, KVP))
                e.I("v_cmp_ne_u32 vcc, 0, v%d" % VSTEP)
                e.I("v_mov_b32 v%d, 0" % T1)
                e.I("v_cndmask_b32 v%d, v%d, v%d, vcc" % (T0, T1, T0))
                e.I("v_add_u32 v%d, v%d, v%d" % (VV, VV, T0))
            stubs = [e.new_label("a2s") for _ in range(9)]
            body = [e.new_label("a2b") for _ in range(9)]
            dispatch(stubs)
            for en in range(9):
                if en:
                    e.begin_stub()
                    e.label(stubs[en])
                k0 = kread(h, en)
                if en < 8:
                    kread(h, en + 1)
                vread(en)
                e.wait_ds(k0)
                qk(h, en, vr(NEGM, 16))
                e.I("s_nop 7")
                e.I("s_nop 3")
                if en:
                    e.I("s_branch %s" % body[en])
                    e.end_stub()
            for jj in range(9):
                e.label(body[jj])
                s = S[jj & 1]
                n_new = 0
                if jj < 8:
                    e.I("s_waitcnt lgkmcnt(4)")
                    qk(h, jj + 1, vr(NEGM, 16))
                    if jj + 2 <= 8:
                        e.I("ds_read_b128 %s, v%d offset:%d" % (vr(KF[jj & 1], 4), VK, L_KV + h * KVP + (jj + 2) * KVB))
                        n_new += 1
                    e.I("v_add_u32 v%d, v%d, v%d" % (VV, VV, VSTEP))
                    d = VF[(jj + 1) & 1]
                    for k in range(4):
                        e.I("ds_read_b64_tr_b16 %s, v%d offset:%d" % (vr(d + 2 * k, 2), VV, 128 * k))
                    n_new += 4
                if jj in (0, 8):
                    mask(jj)
                for half in range(2):
                    for r in range(8):
                        e.I("v_exp_f32 v%d, v%d" % (s + 8 * half + r, s + 8 * half + r))
                    for r in range(4):
                        e.I("v_cvt_pk_bf16_f32 v%d, v%d, v%d"
                            % (P + 4 * half + r, s + 8 * half + 2 * r, s + 8 * half + 2 * r + 1))
                    if half == 0:
                        e.I("s_waitcnt lgkmcnt(%d)" % n_new)
                    e.I("v_mfma_f32_32x32x16_bf16 %s, %s, %s, %s"
                        % (vr(O, 16), vr(VF[jj & 1] + 4 * half, 4), vr(P + 4 * half, 4), vr(O, 16)))
            e.dsq = []
            e.drain_ds()
            e.I("v_rcp_f32 v%d, v%d" % (T0, O + 8))
            for r in range(8):
                e.I("v_mul_f32 v%d, v%d, v%d" % (O + r, O + r, T0))
            for r in range(4):
                e.I("v_cvt_pk_bf16_f32 v%d, v%d, v%d" % (P + r, O + 2 * r, O + 2 * r + 1))
            if l == 0 and h == 0:
                e.drain_vm()
            self.off_o(S_T0, l)
            self.ws_store(vr(P, 4), 4, VG, S_T0, h * 1024)

    def p3(self, l):
        e = self.e
        ACC = VT
        OF = 42
        AF = 106
        VG, VA0, VA1, T0, T1 = 122, 123, 124, 125, 126
        e.I("v_lshlrev_b32 v%d, 4, v%d" % (VG, V_LANE))
        e.I("s_lshl_b32 s%d, s%d, 1" % (S_B0, S_SB))
        e.I("s_add_u32 s%d, s%d, s%d" % (S_B0, S_B0, S_SH))
        e.I("s_lshl_b32 s%d, s%d, 15" % (S_B0, S_B0))
        e.I("s_lshl_b32 s%d, s%d, 14" % (S_T0, S_KH))
        e.I("s_add_u32 s%d, s%d, s%d" % (S_B0, S_B0, S_T0))
        self.sadd(S_B0, S_B0, WS_O[l])

        def oload(i):
            self.sadd(S_T0, S_B0, (i >> 2) * 4096)
            return self.ws_load(vr(OF + 4 * i, 4), 4, VG, S_T0, (i & 3) * 1024)
        oid = [oload(i) for i in range(16)]
        e.I("v_lshrrev_b32 v%d, 5, v%d" % (VA0, V_LANE))
        e.I("v_lshlrev_b32 v%d, 3, v%d" % (VA0, VA0))
        e.I("v_bfe_u32 v%d, v%d, 2, 2" % (T0, V_LANE))
        e.I("v_add_u32 v%d, v%d, v%d" % (VA0, VA0, T0))
        e.I("v_lshlrev_b32 v%d, 7, v%d" % (VA0, VA0))
        e.I("v_bfe_u32 v%d, v%d, 3, 1" % (T0, V_LANE))
        e.I("v_xor_b32 v%d, s%d, v%d" % (T0, S_KH, T0))
        e.I("v_lshlrev_b32 v%d, 6, v%d" % (T0, T0))
        e.I("v_add_u32 v%d, v%d, v%d" % (VA0, VA0, T0))
        e.I("v_bfe_u32 v%d, v%d, 4, 1" % (T0, V_LANE))
        e.I("v_lshlrev_b32 v%d, 5, v%d" % (T0, T0))
        e.I("v_add_u32 v%d, v%d, v%d" % (VA0, VA0, T0))
        e.I("v_and_b32 v%d, 3, v%d" % (T0, V_LANE))
        e.I("v_lshlrev_b32 v%d, 3, v%d" % (T0, T0))
        e.I("v_add_u32 v%d, v%d, v%d" % (VA0, VA0, T0))
        e.I("s_lshl_b32 s%d, s%d, 15" % (S_T0, S_KH))
        self.sadd(S_T0, S_T0, L_WO)
        e.I("v_add_u32 v%d, s%d, v%d" % (VA0, S_T0, VA0))
        e.I("v_xor_b32 v%d, 64, v%d" % (VA1, VA0))
        for k in range(32):
            e.I("v_mov_b32 v%d, 0" % (ACC + k))

        def aread(i):
            for a in range(2):
                d = AF + 8 * (i & 1) + 4 * a
                e.ds("ds_read_b64_tr_b16 %s, v%d offset:%d" % (vr(d, 2), VA0 if a == 0 else VA1, i * 2048))
                last = e.ds("ds_read_b64_tr_b16 %s, v%d offset:%d" % (vr(d + 2, 2), VA0 if a == 0 else VA1, i * 2048 + 512))
            return last
        aid = {0: aread(0)}
        for i in range(16):
            if i % 4 == 0:
                e.wait_vm(oid[i + 3])

                def reissue(i=i):
                    for k in range(i, 16):
                        oload(k)
                self.check([OF + 4 * i + k for k in range(16)], reissue, "p3", T0)
            if i + 1 < 16:
                aid[i + 1] = aread(i + 1)
            e.wait_ds(aid[i])
            for a in range(2):
                e.I("v_mfma_f32_32x32x16_bf16 %s, %s, %s, %s" % (vr(ACC + 16 * a, 16), vr(AF + 8 * (i & 1) + 4 * a, 4),
                                                                vr(OF + 4 * i, 4), vr(ACC + 16 * a, 16)))
        self.stamp("P3 main done L%d" % l)
        e.I("s_xor_b32 s%d, s%d, 2" % (S_T0, S_WAVE))
        e.I("s_lshl_b32 s%d, s%d, 12" % (S_T0, S_T0))
        self.sadd(S_T0, S_T0, L_EX)
        e.I("v_add_u32 v%d, s%d, v%d" % (T0, S_T0, VG))
        for q in range(4):
            e.ds("ds_write_b128 v%d, %s offset:%d" % (T0, vr(ACC + 16 + 4 * q, 4), q * 1024))
        e.barrier()
        if l == 0:
            self.dma_w(OF + 32)
        e.I("s_lshl_b32 s%d, s%d, 12" % (S_T0, S_WAVE))
        self.sadd(S_T0, S_T0, L_EX)
        e.I("v_add_u32 v%d, s%d, v%d" % (T0, S_T0, VG))
        for q in range(4):
            e.ds("ds_read_b128 %s, v%d offset:%d" % (vr(ACC + 16 + 4 * q, 4), T0, q * 1024))
        e.drain_ds()
        X1 = ACC
        for r in range(16):
            e.I("v_add_f32 v%d, v%d, v%d" % (X1 + r, X1 + r, ACC + 16 + r))
        for r in range(8):
            e.I("v_lshlrev_b32 v%d, 16, v%d" % (ACC + 16 + 2 * r, V_XR + r))
            e.I("v_and_b32 v%d, 0xffff0000, v%d" % (ACC + 16 + 2 * r + 1, V_XR + r))
        for r in range(16):
            e.I("v_add_f32 v%d, v%d, v%d" % (X1 + r, X1 + r, ACC + 16 + r))
        for r in range(8):
            e.I("v_cvt_pk_bf16_f32 v%d, v%d, v%d" % (V_XR + r, X1 + 2 * r, X1 + 2 * r + 1))
        for r in range(8):
            e.I("v_lshlrev_b32 v%d, 16, v%d" % (X1 + 2 * r, V_XR + r))
            e.I("v_and_b32 v%d, 0xffff0000, v%d" % (X1 + 2 * r + 1, V_XR + r))
        SU, SQ = OF, OF + 1
        e.I("v_add_f32 v%d, v%d, v%d" % (SU, X1, X1 + 1))
        e.I("v_mul_f32 v%d, v%d, v%d" % (SQ, X1, X1))
        e.I("v_fmac_f32 v%d, v%d, v%d" % (SQ, X1 + 1, X1 + 1))
        for r in range(2, 16):
            e.I("v_add_f32 v%d, v%d, v%d" % (SU, SU, X1 + r))
            e.I("v_fmac_f32 v%d, v%d, v%d" % (SQ, X1 + r, X1 + r))
        for s in (SU, SQ):
            e.I("v_mov_b32 v%d, v%d" % (T0, s))
            e.I("v_permlane32_swap_b32 v%d, v%d" % (s, T0))
            e.I("v_add_f32 v%d, v%d, v%d" % (s, s, T0))
        VS = OF + 2
        e.I("v_and_b32 v%d, 31, v%d" % (VS, V_LANE))
        e.I("v_lshlrev_b32 v%d, 3, v%d" % (VS, VS))
        self.off_st(S_T0, l)
        self.ws_store(vr(SU, 2), 2, VS, S_T0)
        SG = OF + 4
        e.I("v_lshrrev_b32 v%d, 5, v%d" % (T0, V_LANE))
        e.I("v_lshlrev_b32 v%d, 9, v%d" % (T0, T0))
        e.I("v_add_u32 v%d, v%d, v%d" % (VS + 1, VS, T0))
        e.I("s_lshl_b32 s%d, s%d, 13" % (S_B0, S_SB))
        e.I("s_lshl_b32 s%d, s%d, 8" % (S_T0, S_SH))
        e.I("s_add_u32 s%d, s%d, s%d" % (S_B0, S_B0, S_T0))
        self.sadd(S_B0, S_B0, WS_ST[l])

        def sloads():
            for jj in range(8):
                self.sadd(S_T0, S_B0, jj * 1024)
                last = self.ws_load(vr(SG + 2 * jj, 2), 2, VS + 1, S_T0)
            return last
        last = sloads()
        e.wait_vm(last)
        self.check([SG + k for k in range(16)], sloads, "st", T0)
        for jj in range(1, 8):
            e.I("v_add_f32 v%d, v%d, v%d" % (SG, SG, SG + 2 * jj))
            e.I("v_add_f32 v%d, v%d, v%d" % (SG + 1, SG + 1, SG + 2 * jj + 1))
        for s in (SG, SG + 1):
            e.I("v_mov_b32 v%d, v%d" % (T0, s))
            e.I("v_permlane32_swap_b32 v%d, v%d" % (s, T0))
            e.I("v_add_f32 v%d, v%d, v%d" % (s, s, T0))
        MU, VAR, R1, R2 = SG + 2, SG + 3, SG + 4, SG + 5
        e.I("v_mul_f32 v%d, 0x%x, v%d" % (MU, f32(1.0 / 512), SG))
        e.I("v_mul_f32 v%d, 0x%x, v%d" % (VAR, f32(1.0 / 512), SG + 1))
        e.I("v_fma_f32 v%d, -v%d, v%d, v%d" % (VAR, MU, MU, VAR))
        e.I("v_max_f32 v%d, 0, v%d" % (VAR, VAR))
        e.I("v_add_f32 v%d, 0x%x, v%d" % (R1, f32(1e-5), VAR))
        e.I("v_rsq_f32 v%d, v%d" % (R1, R1))
        e.I("v_mul_f32 v%d, v%d, v%d" % (R2, R1, R1))
        e.I("v_mul_f32 v%d, v%d, v%d" % (R2, R2, VAR))
        e.I("v_add_f32 v%d, 0x%x, v%d" % (R2, f32(1e-5), R2))
        e.I("v_rsq_f32 v%d, v%d" % (R2, R2))
        e.I("v_mul_f32 v%d, v%d, v%d" % (R1, R1, R2))
        e.I("v_mul_f32 v%d, v%d, v%d" % (MU, MU, R1))
        for r in range(16):
            e.I("v_fma_f32 v%d, v%d, v%d, -v%d" % (X1 + r, X1 + r, R1, MU))
        HP = ACC + 16
        for r in range(8):
            e.I("v_cvt_pk_bf16_f32 v%d, v%d, v%d" % (HP + r, X1 + 2 * r, X1 + 2 * r + 1))
        e.I("v_and_b32 v%d, 31, v%d" % (T0, V_LANE))
        e.I("s_lshl_b32 s%d, s%d, 5" % (S_T0, S_SH))
        e.I("v_add_u32 v%d, s%d, v%d" % (T0, S_T0, T0))
        e.I("v_mul_u32_u24 v%d, 136, v%d" % (T0, T0))
        e.I("v_lshrrev_b32 v%d, 5, v%d" % (T1, V_LANE))
        e.I("v_lshlrev_b32 v%d, 3, v%d" % (T1, T1))
        e.I("v_add_u32 v%d, v%d, v%d" % (T0, T0, T1))
        e.I("s_lshl_b32 s%d, s%d, 6" % (S_T0, S_KH))
        self.sadd(S_T0, S_T0, L_T)
        e.I("v_add_u32 v%d, s%d, v%d" % (T0, S_T0, T0))
        for q in range(4):
            e.ds("ds_write_b64 v%d, %s offset:%d" % (T0, vr(HP + 2 * q, 2), 16 * q))
        e.barrier()
        e.I("v_lshrrev_b32 v%d, 4, v%d" % (T0, V_LANE))
        e.I("v_lshlrev_b32 v%d, 3, v%d" % (T0, T0))
        e.I("v_bfe_u32 v%d, v%d, 2, 2" % (T1, V_LANE))
        e.I("v_add_u32 v%d, v%d, v%d" % (T0, T0, T1))
        e.I("s_lshl_b32 s%d, s%d, 5" % (S_T0, S_KH))
        e.I("v_add_u32 v%d, s%d, v%d" % (T0, S_T0, T0))
        e.I("v_mul_u32_u24 v%d, 136, v%d" % (T0, T0))
        e.I("v_and_b32 v%d, 3, v%d" % (T1, V_LANE))
        e.I("v_lshlrev_b32 v%d, 3, v%d" % (T1, T1))
        e.I("v_add_u32 v%d, v%d, v%d" % (T0, T0, T1))
        e.I("s_lshl_b32 s%d, s%d, 6" % (S_T0, S_SH))
        self.sadd(S_T0, S_T0, L_T)
        e.I("v_add_u32 v%d, s%d, v%d" % (T0, S_T0, T0))
        HG = OF
        for k in range(2):
            e.ds("ds_read_b64_tr_b16 %s, v%d offset:%d" % (vr(HG + 4 * k, 2), T0, 32 * k))
            e.ds("ds_read_b64_tr_b16 %s, v%d offset:%d" % (vr(HG + 4 * k + 2, 2), T0, 32 * k + 4 * 136))
        e.drain_ds()
        self.off_h(S_T0, l)
        for k in range(2):
            self.ws_store(vr(HG + 4 * k, 4), 4, VG, S_T0, k * 1024)

    def p4(self, l):
        e = self.e
        ACC = VT
        RD = 4
        HF = ACC + 48
        VG, T0, T1 = HF + 16 * RD, HF + 16 * RD + 1, HF + 16 * RD + 2
        BI = T1 + 2
        assert BI + 6 <= 140
        e.I("v_lshlrev_b32 v%d, 4, v%d" % (VG, V_LANE))
        e.I("s_lshl_b32 s%d, s%d, 6" % (S_B0, S_J4))
        e.I("s_lshl_b32 s%d, s%d, 4" % (S_T0, S_WAVE))
        e.I("s_add_u32 s%d, s%d, s%d" % (S_B0, S_B0, S_T0))
        e.I("s_lshl_b32 s%d, s%d, 12" % (S_B0, S_B0))
        self.sadd(S_B0, S_B0, WS_H[l])
        e.I("v_and_b32 v%d, 1, v%d" % (T0, V_LANE))
        e.I("v_lshlrev_b32 v%d, 3, v%d" % (T0, T0))
        e.I("s_mul_i32 s%d, s%d, 96" % (S_T0, S_T))
        e.I("s_lshl_b32 s%d, s%d, 4" % (S_T1, S_SH))
        e.I("s_add_u32 s%d, s%d, s%d" % (S_T0, S_T0, S_T1))
        for fs in range(3):
            bid = e.vm("buffer_load_dwordx2 %s, v%d, %s, s%d offen offset:%d" % (vr(BI + 2 * fs, 2), T0, sr(S_B1, 4), S_T0, 32 * fs))

        def hload(i):
            self.sadd(S_T0, S_B0, i * 4096)
            for dt in range(4):
                last = self.ws_load(vr(HF + 16 * (i % RD) + 4 * dt, 4), 4, VG, S_T0, dt * 1024)
            return last
        hid = {i: hload(i) for i in range(RD)}
        for k in range(48):
            e.I("v_mov_b32 v%d, 0" % (ACC + k))
        for i in range(16):
            e.wait_vm(hid[i])

            def reissue(i=i):
                for k in range(i, min(i + RD, 16)):
                    hload(k)
            self.check([HF + 16 * (i % RD) + k for k in range(16)], reissue, "p4", T0)
            for ft in range(3):
                for dt in range(4):
                    a = ACC + 4 * (4 * ft + dt)
                    e.I("v_mfma_f32_16x16x32_bf16 %s, %s, %s, %s"
                        % (vr(a, 4), w1_reg(i, 4 * ft, 4), vr(HF + 16 * (i % RD) + 4 * dt, 4), vr(a, 4)))
            if i + RD < 16:
                hid[i + RD] = hload(i + RD)
        self.stamp("P4 main done L%d" % l)
        e.I("v_lshrrev_b32 v%d, 4, v%d" % (T0, V_LANE))
        e.I("v_lshlrev_b32 v%d, 10, v%d" % (T0, T0))
        e.I("v_and_b32 v%d, 15, v%d" % (T1, V_LANE))
        e.I("v_lshlrev_b32 v%d, 4, v%d" % (T1, T1))
        e.I("v_add_u32 v%d, v%d, v%d" % (T0, T0, T1))
        e.I("s_mul_i32 s%d, s%d, 12288" % (S_T0, S_WAVE))
        self.sadd(S_T0, S_T0, L_RED)
        e.I("v_add_u32 v%d, s%d, v%d" % (T0, S_T0, T0))
        e.barrier()
        for ft in range(3):
            for dt in range(4):
                e.ds("ds_write_b128 v%d, %s offset:%d" % (T0, vr(ACC + 4 * (4 * ft + dt), 4), ft * 4096 + dt * 256))
                if len(e.dsq) > 8:
                    e.wait_ds(e.dsq[-8])
        e.barrier()
        e.I("v_and_b32 v%d, 1, v%d" % (T0, V_LANE))
        e.I("v_lshlrev_b32 v%d, 10, v%d" % (T0, T0))
        e.I("v_lshrrev_b32 v%d, 1, v%d" % (T1, V_LANE))
        e.I("v_lshlrev_b32 v%d, 4, v%d" % (T1, T1))
        e.I("v_add_u32 v%d, v%d, v%d" % (T0, T0, T1))
        e.I("s_lshl_b32 s%d, s%d, 11" % (S_T0, S_SH))
        e.I("s_lshl_b32 s%d, s%d, 9" % (S_T1, S_KH))
        e.I("s_add_u32 s%d, s%d, s%d" % (S_T0, S_T0, S_T1))
        self.sadd(S_T0, S_T0, L_RED)
        e.I("v_add_u32 v%d, s%d, v%d" % (T0, S_T0, T0))
        RR = ACC
        for fs in range(3):
            for wv in range(4):
                e.ds("ds_read_b128 %s, v%d offset:%d" % (vr(RR + 16 * fs + 4 * wv, 4), T0, wv * 12288 + fs * 4096))
        e.wait_vm(bid)
        e.drain_ds()
        c0 = -2.0 * math.log2(math.e) * math.sqrt(2.0 / math.pi)
        c1 = c0 * 0.044715
        K0, K1 = HF, HF + 1
        e.I("v_mov_b32 v%d, 0x%x" % (K0, f32(c0)))
        e.I("v_mov_b32 v%d, 0x%x" % (K1, f32(c1)))
        UP = HF + 4
        TT = HF + 12
        e.I("v_lshlrev_b32 v%d, 3, v%d" % (T1, V_LANE))
        self.off_u(S_B0, l)
        for fs in range(3):
            b = RR + 16 * fs
            for r in range(4):
                e.I("v_add_f32 v%d, v%d, v%d" % (b + r, b + r, b + 4 + r))
                e.I("v_add_f32 v%d, v%d, v%d" % (b + 8 + r, b + 8 + r, b + 12 + r))
            for r in range(2):
                e.I("v_lshlrev_b32 v%d, 16, v%d" % (b + 4 + 2 * r, BI + 2 * fs + r))
                e.I("v_and_b32 v%d, 0xffff0000, v%d" % (b + 4 + 2 * r + 1, BI + 2 * fs + r))
            for r in range(4):
                e.I("v_add_f32 v%d, v%d, v%d" % (b + r, b + r, b + 8 + r))
            for r in range(4):
                e.I("v_add_f32 v%d, v%d, v%d" % (b + r, b + r, b + 4 + r))
            for r in range(4):
                e.I("v_mul_f32 v%d, v%d, v%d" % (TT + r, b + r, b + r))
            for r in range(4):
                e.I("v_fma_f32 v%d, v%d, v%d, v%d" % (TT + r, TT + r, K1, K0))
            for r in range(4):
                e.I("v_mul_f32 v%d, v%d, v%d" % (TT + r, TT + r, b + r))
            for r in range(4):
                e.I("v_exp_f32 v%d, v%d" % (TT + r, TT + r))
            for r in range(4):
                e.I("v_add_f32 v%d, 1.0, v%d" % (TT + r, TT + r))
            for r in range(4):
                e.I("v_rcp_f32 v%d, v%d" % (TT + r, TT + r))
            for r in range(4):
                e.I("v_mul_f32 v%d, v%d, v%d" % (b + r, b + r, TT + r))
            for r in range(2):
                e.I("v_cvt_pk_bf16_f32 v%d, v%d, v%d" % (UP + 2 * fs + r, b + 2 * r, b + 2 * r + 1))
            self.ws_store(vr(UP + 2 * fs, 2), 2, T1, S_B0, fs * 1024)

    def p5(self, l):
        e = self.e
        ACC = VT
        RD = 7
        UF = ACC + 64
        VG, T0, T1 = UF + 8 * RD, UF + 8 * RD + 1, UF + 8 * RD + 2
        assert T1 + 1 <= 140
        e.I("v_lshlrev_b32 v%d, 4, v%d" % (VG, V_LANE))
        for a in range(2):
            dst = S_B0 if a == 0 else S_B1X
            e.I("s_xor_b32 s%d, s%d, %d" % (dst, S_KH, a))
            e.I("s_lshl_b32 s%d, s%d, 1" % (S_T0, S_J))
            e.I("s_add_u32 s%d, s%d, s%d" % (dst, dst, S_T0))
            e.I("s_mul_i32 s%d, s%d, %d" % (dst, dst, 96 * 1024))
            self.sadd(dst, dst, WS_U[l])
        e.I("s_mul_i32 s%d, s%d, 22" % (S_B2X, S_WAVE))

        def uload(i):
            e.I("s_add_u32 s%d, s%d, %d" % (S_T0, S_B2X, i))
            e.I("s_min_u32 s%d, s%d, 85" % (S_T0, S_T0))
            e.I("s_lshl_b32 s%d, s%d, 10" % (S_T0, S_T0))
            for a in range(2):
                e.I("s_add_u32 s%d, s%d, s%d" % (S_T1 + a, S_T0, S_B0 if a == 0 else S_B1X))
                last = self.ws_load(vr(UF + 8 * (i % RD) + 4 * a, 4), 4, VG, S_T1 + a)
            return last
        uid = {i: uload(i) for i in range(RD)}
        for k in range(64):
            e.I("v_mov_b32 v%d, 0" % (ACC + k))
        for i in range(22):
            e.wait_vm(uid[i])

            def reissue(i=i):
                for k in range(i, min(i + RD, 22)):
                    uload(k)
            self.check([UF + 8 * (i % RD) + k for k in range(8)], reissue, "p5", T0)
            for a in range(2):
                for b in range(2):
                    c = ACC + 16 * (2 * a + b)
                    e.I("v_mfma_f32_32x32x16_bf16 %s, %s, %s, %s"
                        % (vr(c, 16), vr(UF + 8 * (i % RD) + 4 * a, 4), w2_reg(i, 4 * b, 4), vr(c, 16)))
            if i + RD < 22:
                uid[i + RD] = uload(i + RD)
        self.stamp("P5 main done L%d" % l)
        e.barrier()
        for q in range(1, 4):
            e.I("s_xor_b32 s%d, s%d, %d" % (S_T0, S_WAVE, q))
            e.I("s_mul_i32 s%d, s%d, 3" % (S_T0, S_T0))
            e.I("s_add_u32 s%d, s%d, %d" % (S_T0, S_T0, q - 1))
            e.I("s_lshl_b32 s%d, s%d, 12" % (S_T0, S_T0))
            self.sadd(S_T0, S_T0, L_RED)
            e.I("v_add_u32 v%d, s%d, v%d" % (T0, S_T0, VG))
            for k in range(4):
                e.ds("ds_write_b128 v%d, %s offset:%d" % (T0, vr(ACC + 16 * q + 4 * k, 4), k * 1024))
            e.wait_ds(e.dsq[-4])
        e.barrier()
        e.I("s_mul_i32 s%d, s%d, %d" % (S_T0, S_WAVE, 3 * 4096))
        self.sadd(S_T0, S_T0, L_RED)
        e.I("v_add_u32 v%d, s%d, v%d" % (T0, S_T0, VG))
        for q in range(1, 4):
            for k in range(4):
                e.ds("ds_read_b128 %s, v%d offset:%d" % (vr(ACC + 16 * q + 4 * k, 4), T0, (q - 1) * 4096 + k * 1024))
        e.drain_ds()
        for r in range(16):
            e.I("v_add_f32 v%d, v%d, v%d" % (ACC + r, ACC + r, ACC + 16 + r))
            e.I("v_add_f32 v%d, v%d, v%d" % (ACC + 32 + r, ACC + 32 + r, ACC + 48 + r))
        for r in range(8):
            e.I("v_lshlrev_b32 v%d, 16, v%d" % (ACC + 16 + 2 * r, V_XR + r))
            e.I("v_and_b32 v%d, 0xffff0000, v%d" % (ACC + 16 + 2 * r + 1, V_XR + r))
        for r in range(16):
            e.I("v_add_f32 v%d, v%d, v%d" % (ACC + r, ACC + r, ACC + 32 + r))
        for r in range(16):
            e.I("v_add_f32 v%d, v%d, v%d" % (ACC + r, ACC + r, V_B2))
        for r in range(16):
            e.I("v_add_f32 v%d, v%d, v%d" % (ACC + r, ACC + r, ACC + 16 + r))
        for r in range(8):
            e.I("v_cvt_pk_bf16_f32 v%d, v%d, v%d" % (V_XR + r, ACC + 2 * r, ACC + 2 * r + 1))
        if l == 0:
            self.off_x0(S_T0)
            for k in range(2):
                self.ws_store(vr(V_XR + 4 * k, 4), 4, VG, S_T0, k * 1024)
        else:
            for k in range(8):
                e.I("v_mov_b32 v%d, v%d" % (ACC + k, V_XR + k))
            for k in range(2):
                e.I("v_permlane32_swap_b32 v%d, v%d" % (ACC + 4 * k, ACC + 4 * k + 2))
                e.I("v_permlane32_swap_b32 v%d, v%d" % (ACC + 4 * k + 1, ACC + 4 * k + 3))
            e.I("v_and_b32 v%d, 31, v%d" % (T0, V_LANE))
            e.I("s_lshl_b32 s%d, s%d, 6" % (S_T0, S_SB))
            e.I("s_lshl_b32 s%d, s%d, 5" % (S_T1, S_SH))
            e.I("s_add_u32 s%d, s%d, s%d" % (S_T0, S_T0, S_T1))
            e.I("v_add_u32 v%d, s%d, v%d" % (T0, S_T0, T0))
            e.I("v_lshlrev_b32 v%d, 10, v%d" % (T0, T0))
            e.I("v_lshrrev_b32 v%d, 5, v%d" % (T1, V_LANE))
            e.I("v_lshlrev_b32 v%d, 4, v%d" % (T1, T1))
            e.I("v_add_u32 v%d, v%d, v%d" % (T0, T0, T1))
            e.I("s_lshl_b32 s%d, s%d, 7" % (S_T0, S_J))
            e.I("s_lshl_b32 s%d, s%d, 6" % (S_T1, S_KH))
            e.I("s_add_u32 s%d, s%d, s%d" % (S_T0, S_T0, S_T1))
            for k in range(2):
                e.vm("buffer_store_dwordx4 %s, v%d, %s, s%d offen offset:%d"
                     % (vr(ACC + 4 * k, 4), T0, sr(S_OUT, 4), S_T0, 32 * k))

    def build(self):
        e = self.e
        stop = self.o.stop
        self.prologue()
        self.stamp("start")
        done = False
        for l in range(2):
            for name, fn in (("p1", self.p1), ("p2", self.p2), ("p3", self.p3), ("p4", self.p4), ("p5", self.p5)):
                fn(l)
                self.stamp("%s end L%d" % (name, l))
                if l == 0 and name == "p1":
                    e.barrier()
                    ids2 = self.load_w2_raw(126, range(22))
                    self.transpose_w2(126, range(22), ids2)
                    ids1 = self.load_w1_raw(126, range(16))
                    self.transpose_w1(126, range(16), ids1)
                    self.stamp("weights L0")
                if stop == "%s_%d" % (name, l):
                    done = True
                    break
            if done:
                break
        e.drain()
        e.label("L_END")
        e.I("s_endpgm")
        return e.text()


HEADER = """; Sliding-window attention / token-mixer stack as one persistent kernel: 256 workgroups, one per CU.
; @launch grid=(256,1,1) block=(256,1,1) lds=%d
.amdgcn_target "amdgcn-amd-amdhsa--gfx950"
.text
.globl %s
.p2align 8
.type %s,@function
%s:
"""

FOOTER = """
L_CODE_END:
.section .rodata,"a"
.p2align 6
.amdhsa_kernel %s
  .amdhsa_next_free_vgpr 512
  .amdhsa_next_free_sgpr 102
  .amdhsa_accum_offset 256
  .amdhsa_group_segment_fixed_size 0
  .amdhsa_kernarg_size 88
  .amdhsa_user_sgpr_count 2
  .amdhsa_user_sgpr_kernarg_segment_ptr 1
  .amdhsa_system_sgpr_workgroup_id_x 1
  .amdhsa_float_denorm_mode_32 3
.end_amdhsa_kernel
"""


def main():
    ap = argparse.ArgumentParser()
    ap.add_argument("-o", default="interleave_layers__sliding_block__mixer_token_mlp__prompt.s")
    ap.add_argument("--stop", default="")
    ap.add_argument("--prof", action="store_true")
    ap.add_argument("--budget", type=int, default=100000)
    opt = ap.parse_args()
    for p in range(192):
        assert (p * 171) >> 11 == p // 12 and (p * 342) >> 11 == p // 6
    g = Gen(opt)
    body = g.build()
    open(opt.o, "w").write(HEADER % (LDS_BYTES, KNAME, KNAME, KNAME) + body + FOOTER % KNAME)


if __name__ == "__main__":
    main()
```

```python
import math
import struct
import sys
from collections import deque

from asmlib import Emitter, vr, ar, sr

KNAME = "interleave_layers__sliding_block__mixer_token_mlp__prompt_kernel"

MB = 1 << 20
WS_KV = [0 * MB, 4 * MB]
WS_O = [8 * MB, 10 * MB]
WS_H = [12 * MB, 14 * MB]
WS_U = [16 * MB, 18 * MB]
WS_X0 = 20 * MB
WS_ST = [22 * MB, 22 * MB + 256 * 1024]
WS_ST2 = 22 * MB + 512 * 1024
WS_PROF = 24 * MB
WS_W1P = 26 * MB
WS_W2P = 32 * MB
WS_WPK = 38 * MB
WS_BYTES = 40 * MB

LDS_BYTES = 163840
L_W = 0
KVB = 1152
KVP = 12 * KVB
L_KV = 0
L_ONES = 4 * KVP
L_WO = 57344
L_EX = 122880
L_T = 139264
L_RED = 98304
L_XS = 98304
L_TRS = 147968
L_CSP = 147968
L_CS = 160256

S_ROT5, S_BG2 = 0, 1
S_ROT4 = 3
S_X, S_WQKV, S_WO, S_W1, S_B1, S_W2, S_B2, S_OUT, S_DBG, S_WS = 4, 8, 12, 16, 20, 24, 28, 32, 36, 40
S_MASK = 44
S_WAVE, S_RB, S_HP, S_SB, S_J, S_J4, S_T, S_NSKIP, S_BUDGET = 76, 77, 78, 79, 80, 81, 82, 83, 84
S_ONES = 85
S_B0, S_B1X, S_B2X = 86, 87, 88
S_T0, S_T1, S_T2, S_T3 = 89, 90, 91, 92
S_LOCAL = 93
S_PC = 94
S_CODE = 96
S_BG0, S_BG1 = 96, 97
S_KH, S_SH = 100, 101

V_LANE = 0
V_B2 = 1
V_XR = 2
VT = 10
V_BG = 133
W2_V0 = 144
W2_A0 = 192
NEG_INF = 0xFF800000
SCALE_Q = 0.25 * math.log2(math.e)


def f32(x):
    return struct.unpack("<I", struct.pack("<f", x))[0]


def w2_reg(i, off, n):
    return ar(W2_A0 + 8 * i + off, n) if i < 8 else vr(W2_V0 + 8 * (i - 8) + off, n)


def w1_reg(i, off, n):
    return ar(12 * i + off, n)


class Base:
    def __init__(self, opt):
        self.o = opt
        self.e = Emitter()
        self.nstamp = 0
        self.bg = deque()

    def stamp(self, name):
        if not self.o.prof:
            return
        e = self.e
        idx = self.nstamp
        self.nstamp += 1
        print("stamp %d: %s" % (idx, name), file=sys.stderr)
        e.drain_ds()
        e.I("s_memrealtime s[98:99]")
        e.I("s_memtime s[94:95]")
        e.I("s_waitcnt lgkmcnt(0)")
        e.I("v_writelane_b32 v142, s98, %d" % idx)
        e.I("v_writelane_b32 v143, s94, %d" % idx)

    def stamp_flush(self):
        if not self.o.prof:
            return
        e = self.e
        e.I("s_lshl_b32 s%d, s2, 2" % S_T3)
        e.I("s_add_u32 s%d, s%d, s%d" % (S_T3, S_T3, S_WAVE))
        e.I("s_lshl_b32 s%d, s%d, 9" % (S_T3, S_T3))
        e.I("s_add_u32 s%d, s%d, 0x%x" % (S_T3, S_T3, WS_PROF))
        e.I("v_lshlrev_b32 v141, 3, v%d" % V_LANE)
        e.vm("buffer_store_dwordx2 v[142:143], v141, %s, s%d offen" % (sr(S_WS, 4), S_T3))

    def bg_add(self, fns):
        self.bg.extend(fns)

    def bg_emit(self, n=1):
        while n > 0 and self.bg:
            self.bg.popleft()()
            n -= 1

    def bg_flush(self):
        self.bg_emit(1 << 30)

    def chain(self, regs, tmp):
        e = self.e
        r = list(regs)
        e.I("v_max3_u32 v%d, v%d, v%d, v%d" % (tmp, r[0], r[1], r[2]))
        k = 3
        while k + 1 < len(r):
            e.I("v_max3_u32 v%d, v%d, v%d, v%d" % (tmp, tmp, r[k], r[k + 1]))
            k += 2
        if k < len(r):
            e.I("v_max_u32 v%d, v%d, v%d" % (tmp, tmp, r[k]))
        e.I("v_cmp_eq_u32 vcc, -1, v%d" % tmp)

    def check(self, regs, reissue, name, tmp):
        e = self.e
        retry, back = e.new_label("rt_" + name), e.new_label("bk_" + name)
        self.chain(regs, tmp)
        e.I("s_cbranch_vccnz %s" % retry)
        e.label(back)
        e.begin_stub()
        e.label(retry)
        e.I("s_cmp_eq_u32 s%d, 0" % S_BUDGET)
        e.I("s_cbranch_scc1 %s" % back)
        e.I("s_sub_u32 s%d, s%d, 1" % (S_BUDGET, S_BUDGET))
        e.I("s_nop 4")
        reissue()
        e.drain_vm()
        self.chain(regs, tmp)
        e.I("s_cbranch_vccnz %s" % retry)
        e.I("s_branch %s" % back)
        e.end_stub()

    def ws_load(self, dst, n, voff, soff, imm=0):
        op = {1: "dword", 2: "dwordx2", 4: "dwordx4"}[n]
        return self.e.vm("buffer_load_%s %s, v%d, %s, s%d offen offset:%d sc1" % (op, dst, voff, sr(S_WS, 4), soff, imm))

    def _store_text(self, src, n, voff, soff, imm, sc1):
        op = {1: "dword", 2: "dwordx2", 4: "dwordx4"}[n]
        return "buffer_store_%s %s, v%d, %s, s%d offen offset:%d%s" % (op, src, voff, sr(S_WS, 4), soff, imm,
                                                                      " sc1" if sc1 else "")

    def ws_store(self, src, n, voff, soff, imm=0):
        return self.e.vm(self._store_text(src, n, voff, soff, imm, True))

    def ws_store_near(self, stores):
        e = self.e
        far, done = e.new_label("far"), e.new_label("stored")
        e.I("s_cmp_eq_u32 s%d, 0" % S_LOCAL)
        e.I("s_cbranch_scc1 %s" % far)
        for st in stores:
            e.I(self._store_text(*st, False))
        e.I("s_branch %s" % done)
        e.label(far)
        for st in stores:
            e.vm(self._store_text(*st, True))
        e.label(done)

    def sadd(self, dst, base, const):
        self.e.I("s_add_u32 s%d, s%d, 0x%x" % (dst, base, const))

    def off_kv(self, dst, l, tmp=S_T3):
        e = self.e
        e.I("s_lshl_b32 s%d, s%d, 18" % (dst, S_HP))
        e.I("s_lshl_b32 s%d, s%d, 12" % (tmp, S_RB))
        e.I("s_add_u32 s%d, s%d, s%d" % (dst, dst, tmp))
        e.I("s_lshl_b32 s%d, s%d, 10" % (tmp, S_WAVE))
        e.I("s_add_u32 s%d, s%d, s%d" % (dst, dst, tmp))
        if WS_KV[l]:
            self.sadd(dst, dst, WS_KV[l])

    def off_o(self, dst, l, tmp=S_T3):
        e = self.e
        e.I("s_lshl_b32 s%d, s%d, 2" % (dst, S_RB))
        e.I("s_add_u32 s%d, s%d, s%d" % (dst, dst, S_WAVE))
        e.I("s_lshl_b32 s%d, s%d, 15" % (dst, dst))
        e.I("s_lshl_b32 s%d, s%d, 11" % (tmp, S_HP))
        e.I("s_add_u32 s%d, s%d, s%d" % (dst, dst, tmp))
        self.sadd(dst, dst, WS_O[l])

    def off_st(self, dst, base, tmp=S_T3):
        e = self.e
        e.I("s_lshl_b32 s%d, s%d, 3" % (dst, S_SB))
        e.I("s_add_u32 s%d, s%d, s%d" % (dst, dst, S_J))
        e.I("s_lshl_b32 s%d, s%d, 1" % (dst, dst))
        e.I("s_add_u32 s%d, s%d, s%d" % (dst, dst, S_KH))
        e.I("s_lshl_b32 s%d, s%d, 9" % (dst, dst))
        e.I("s_lshl_b32 s%d, s%d, 8" % (tmp, S_SH))
        e.I("s_add_u32 s%d, s%d, s%d" % (dst, dst, tmp))
        self.sadd(dst, dst, base)

    def off_h(self, dst, l, tmp=S_T3):
        e = self.e
        e.I("s_lshl_b32 s%d, s%d, 6" % (dst, S_J))
        e.I("s_lshl_b32 s%d, s%d, 1" % (tmp, S_SB))
        e.I("s_add_u32 s%d, s%d, s%d" % (dst, dst, tmp))
        e.I("s_add_u32 s%d, s%d, s%d" % (dst, dst, S_KH))
        e.I("s_lshl_b32 s%d, s%d, 12" % (dst, dst))
        e.I("s_lshl_b32 s%d, s%d, 11" % (tmp, S_SH))
        e.I("s_add_u32 s%d, s%d, s%d" % (dst, dst, tmp))
        self.sadd(dst, dst, WS_H[l])

    def off_u(self, dst, l, tmp=S_T3):
        e = self.e
        e.I("s_lshl_b32 s%d, s%d, 1" % (dst, S_J4))
        e.I("s_add_u32 s%d, s%d, s%d" % (dst, dst, S_KH))
        e.I("s_mul_i32 s%d, s%d, 96" % (dst, dst))
        e.I("s_mul_i32 s%d, s%d, 3" % (tmp, S_T))
        e.I("s_add_u32 s%d, s%d, s%d" % (dst, dst, tmp))
        e.I("s_lshl_b32 s%d, s%d, 10" % (dst, dst))
        self.sadd(dst, dst, WS_U[l])

    def off_x0(self, dst, tmp=S_T3):
        e = self.e
        e.I("s_lshl_b32 s%d, s%d, 1" % (dst, S_SB))
        e.I("s_add_u32 s%d, s%d, s%d" % (dst, dst, S_SH))
        e.I("s_lshl_b32 s%d, s%d, 5" % (dst, dst))
        e.I("s_lshl_b32 s%d, s%d, 2" % (tmp, S_J))
        e.I("s_add_u32 s%d, s%d, s%d" % (dst, dst, tmp))
        e.I("s_lshl_b32 s%d, s%d, 1" % (tmp, S_KH))
        e.I("s_add_u32 s%d, s%d, s%d" % (dst, dst, tmp))
        e.I("s_lshl_b32 s%d, s%d, 10" % (dst, dst))
        self.sadd(dst, dst, WS_X0)

    def poison_ops(self, groups, vb, s0, s1, stmp):
        e = self.e
        ops = []

        def setup():
            for k in range(4):
                e.I("v_mov_b32 v%d, -1" % (vb + k))
            e.I("v_lshlrev_b32 v%d, 4, v%d" % (vb + 4, V_LANE))
            e.I("v_lshlrev_b32 v%d, 3, v%d" % (vb + 5, V_LANE))
            e.I("v_and_b32 v%d, 31, v%d" % (vb + 6, V_LANE))
            e.I("v_lshlrev_b32 v%d, 3, v%d" % (vb + 6, vb + 6))
        ops.append(setup)
        for kind, layers in groups:
            l0 = layers[0]
            base = {"kv": WS_KV, "o": WS_O, "h": WS_H, "st": WS_ST, "u": WS_U}.get(kind)
            if kind == "kv":
                items = [(p * 65536, 0, 4, 4) for p in range(4)]
            elif kind in ("o", "h", "x0"):
                items = [(0, 0, 4, 4), (0, 1024, 4, 4)]
            elif kind in ("st", "st2"):
                items = [(0, 0, 2, 6)]
            else:
                items = [(0, fs * 1024, 2, 5) for fs in range(3)]
            first = True
            for l in layers:
                dl = (base[l] - base[l0]) if base else 0
                prev = None
                for add, imm, n, va in items:
                    def f(first=first, add=add + dl, imm=imm, n=n, va=va, kind=kind, l0=l0, same=(prev == add + dl)):
                        if first:
                            if kind == "kv":
                                self.off_kv(s0, l0, stmp)
                            elif kind == "o":
                                self.off_o(s0, l0, stmp)
                            elif kind == "h":
                                self.off_h(s0, l0, stmp)
                            elif kind == "x0":
                                self.off_x0(s0, stmp)
                            elif kind == "st":
                                self.off_st(s0, WS_ST[l0], stmp)
                            elif kind == "st2":
                                self.off_st(s0, WS_ST2, stmp)
                            else:
                                self.off_u(s0, l0, stmp)
                                e.I("s_lshl_b32 s%d, s%d, 9" % (stmp, S_SH))
                                e.I("s_add_u32 s%d, s%d, s%d" % (s0, s0, stmp))
                        if add == 0:
                            self.ws_store(vr(vb, n), n, vb + va, s0, imm)
                        else:
                            if not same:
                                self.sadd(s1, s0, add)
                            self.ws_store(vr(vb, n), n, vb + va, s1, imm)
                    ops.append(f)
                    first = False
                    prev = add + dl
        return ops
```

```python
from g2_base import *


class Load(Base):
    def prologue(self):
        e = self.e
        e.I("s_cmp_ge_u32 s2, 256")
        e.I("s_cbranch_scc1 L_END")
        self.sizes = {S_X: (0, 2097152), S_WQKV: (8, 1572864), S_WS: (80, WS_BYTES), S_WO: (16, 524288),
                      S_W1: (32, 5636096), S_B1: (40, 2752), S_W2: (48, 5636096), S_B2: (56, 4096),
                      S_OUT: (64, 2097152), S_DBG: (72, 256)}
        for s, (off, _) in self.sizes.items():
            e.I("s_load_dwordx2 %s, s[0:1], %d" % (sr(s, 2), off))
        e.I("v_lshrrev_b32 v1, 6, v0")
        e.I("v_and_b32 v0, 63, v0")
        e.I("v_readfirstlane_b32 s%d, v1" % S_WAVE)
        e.I("s_and_b32 s%d, s2, 7" % S_T0)
        e.I("s_lshr_b32 s%d, s2, 3" % S_T1)
        e.I("s_lshr_b32 s%d, s%d, 4" % (S_T2, S_T1))
        e.I("s_lshl_b32 s%d, s%d, 1" % (S_RB, S_T0))
        e.I("s_add_u32 s%d, s%d, s%d" % (S_RB, S_RB, S_T2))
        e.I("s_and_b32 s%d, s%d, 15" % (S_HP, S_T1))
        if self.o.hpxor:
            e.I("s_xor_b32 s%d, s%d, %d" % (S_HP, S_HP, self.o.hpxor))
        for s in (S_X, S_WQKV, S_WS):
            e.I("s_mov_b32 s%d, 0x%x" % (s + 2, self.sizes[s][1]))
            e.I("s_mov_b32 s%d, 0x00020000" % (s + 3))
        e.I("s_getpc_b64 %s" % sr(S_PC, 2))
        e.label("L_PC")
        e.I("s_sub_u32 s%d, s%d, L_PC-%s" % (S_CODE, S_PC, KNAME))
        e.I("s_subb_u32 s%d, s%d, 0" % (S_CODE + 1, S_PC + 1))
        e.I("s_mov_b32 s%d, L_CODE_END-%s" % (S_CODE + 2, KNAME))
        e.I("s_mov_b32 s%d, 0x00020000" % (S_CODE + 3))
        e.I("s_lshl_b32 s%d, s%d, 2" % (S_T2, S_T1))
        e.I("s_add_u32 s%d, s%d, s%d" % (S_T2, S_T2, S_WAVE))
        e.I("s_lshl_b32 s%d, s%d, 13" % (S_T2, S_T2))
        e.I("v_lshlrev_b32 v1, 7, v0")
        e.vm("buffer_load_dword v1, v1, %s, s%d offen" % (sr(S_CODE, 4), S_T2))
        e.I("s_waitcnt lgkmcnt(0)")
        if self.o.touch:
            e.I("s_lshl_b32 s%d, s2, 2" % S_T2)
            e.I("s_add_u32 s%d, s%d, s%d" % (S_T2, S_T2, S_WAVE))
            e.I("s_lshl_b32 s%d, s%d, 13" % (S_T2, S_T2))
            e.I("v_lshlrev_b32 v2, 7, v0")
            e.vm("buffer_load_dword v2, v2, %s, s%d offen" % (sr(S_WQKV, 4), S_T2))

    def prologue_rest(self):
        e = self.e
        for s, (_, n) in self.sizes.items():
            if s in (S_X, S_WQKV, S_WS):
                continue
            e.I("s_mov_b32 s%d, 0x%x" % (s + 2, n))
            e.I("s_mov_b32 s%d, 0x00020000" % (s + 3))
        e.I("s_and_b32 s%d, s2, 7" % S_T0)
        e.I("s_lshr_b32 s%d, s2, 3" % S_T1)
        e.I("s_lshr_b32 s%d, s%d, 3" % (S_T2, S_T1))
        e.I("s_lshl_b32 s%d, s%d, 2" % (S_SB, S_T0))
        e.I("s_add_u32 s%d, s%d, s%d" % (S_SB, S_SB, S_T2))
        e.I("s_mul_i32 s%d, s%d, %d" % (S_ROT5, S_T2, self.o.rot5))
        e.I("s_and_b32 s%d, s%d, 7" % (S_J, S_T1))
        e.I("s_and_b32 s%d, s%d, 1" % (S_T2, S_T0))
        e.I("s_lshl_b32 s%d, s%d, 2" % (S_J4, S_T2))
        e.I("s_and_b32 s%d, s%d, 3" % (S_T2, S_T1))
        e.I("s_add_u32 s%d, s%d, s%d" % (S_J4, S_J4, S_T2))
        e.I("s_lshr_b32 s%d, s%d, 1" % (S_T, S_T0))
        e.I("s_lshl_b32 s%d, s%d, 3" % (S_T, S_T))
        e.I("s_lshr_b32 s%d, s%d, 2" % (S_T2, S_T1))
        e.I("s_add_u32 s%d, s%d, s%d" % (S_T, S_T, S_T2))
        e.I("s_mul_i32 s%d, s%d, %d" % (S_ROT4, S_T2, self.o.rot4))
        e.I("s_lshr_b32 s%d, s%d, 1" % (S_KH, S_WAVE))
        e.I("s_and_b32 s%d, s%d, 1" % (S_SH, S_WAVE))
        e.I("s_lshl_b32 s%d, s%d, 2" % (S_T2, S_RB))
        e.I("s_add_u32 s%d, s%d, s%d" % (S_T2, S_T2, S_WAVE))
        e.I("s_min_u32 s%d, s%d, 8" % (S_T2, S_T2))
        e.I("s_sub_u32 s%d, 8, s%d" % (S_NSKIP, S_T2))
        e.I("s_mov_b32 s%d, %d" % (S_BUDGET, self.o.budget))
        e.I("s_mov_b32 s%d, 0x3f803f80" % S_ONES)
        e.I("s_mov_b32 s%d, 0" % S_LOCAL)

    def set_masks(self):
        e = self.e
        for r in range(16):
            m = 0
            for l in range(64):
                row = 8 * (r >> 2) + 4 * (l >> 5) + (r & 3)
                if row <= (l & 31):
                    m |= 1 << l
            e.I("s_mov_b32 s%d, 0x%x" % (S_MASK + 2 * r, m & 0xFFFFFFFF))
            e.I("s_mov_b32 s%d, 0x%x" % (S_MASK + 2 * r + 1, m >> 32))

    def dma_w_ops(self, vt, s0, s1, s2):
        e = self.e
        ops = []

        def setup():
            for q in range(3):
                p, row, c = vt + 3, vt + 4, vt + 5
                e.I("v_add_u32 v%d, %d, v%d" % (p, 64 * q, V_LANE))
                e.I("v_mul_u32_u24 v%d, 171, v%d" % (row, p))
                e.I("v_lshrrev_b32 v%d, 11, v%d" % (row, row))
                e.I("v_mul_u32_u24 v%d, 12, v%d" % (c, row))
                e.I("v_sub_u32 v%d, v%d, v%d" % (c, p, c))
                e.I("v_mul_u32_u24 v%d, 0xc00, v%d" % (vt + q, row))
                e.I("v_lshrrev_b32 v%d, 2, v%d" % (p, c))
                e.I("v_lshlrev_b32 v%d, 10, v%d" % (p, p))
                e.I("v_add_u32 v%d, v%d, v%d" % (vt + q, vt + q, p))
                e.I("v_and_b32 v%d, 3, v%d" % (c, c))
                e.I("v_lshlrev_b32 v%d, 4, v%d" % (c, c))
                e.I("v_add_u32 v%d, v%d, v%d" % (vt + q, vt + q, c))
            e.I("s_mul_i32 s%d, s%d, %d" % (s0, S_WAVE, 128 * 3072))
            e.I("s_lshl_b32 s%d, s%d, 6" % (s1, S_HP))
            e.I("s_add_u32 s%d, s%d, s%d" % (s0, s0, s1))
            e.I("s_mul_i32 s%d, s%d, %d" % (s1, S_WAVE, 8 * 3072))
        ops.append(setup)
        self.w_ids = {}
        for grp in range(8):
            for q in range(3):
                def f(grp=grp, q=q):
                    if q == 0:
                        e.I("s_add_u32 s%d, s%d, %d" % (s2, S_RB, grp))
                        e.I("s_and_b32 s%d, s%d, 7" % (s2, s2))
                        e.I("s_mul_i32 s%d, s%d, 3072" % (S_BG2, s2))
                        e.I("s_add_u32 s%d, s%d, s%d" % (S_BG2, S_BG2, s1))
                        e.I("s_mul_i32 s%d, s%d, %d" % (s2, s2, 16 * 3072))
                        e.I("s_add_u32 s%d, s%d, s%d" % (s2, s2, s0))
                    e.I("s_add_u32 m0, s%d, %d" % (S_BG2, L_W + q * 1024))
                    e.I("s_nop 0")
                    self.w_ids[grp] = e.vm("buffer_load_dwordx4 v%d, %s, s%d offen lds" % (vt + q, sr(S_WQKV, 4), s2))
                ops.append(f)
        return ops

    def dma_wo_ops(self, vt, s0, s1, s2):
        e = self.e
        ops = []

        def setup():
            e.I("v_lshrrev_b32 v%d, 3, v%d" % (vt, V_LANE))
            e.I("v_lshlrev_b32 v%d, 10, v%d" % (vt, vt))
            e.I("v_and_b32 v%d, 7, v%d" % (vt + 1, V_LANE))
            e.I("v_lshrrev_b32 v%d, 4, v%d" % (vt + 2, V_LANE))
            e.I("v_and_b32 v%d, 1, v%d" % (vt + 2, vt + 2))
            e.I("v_lshlrev_b32 v%d, 2, v%d" % (vt + 2, vt + 2))
            e.I("v_xor_b32 v%d, v%d, v%d" % (vt + 1, vt + 1, vt + 2))
            e.I("v_lshlrev_b32 v%d, 4, v%d" % (vt + 1, vt + 1))
            e.I("v_add_u32 v%d, v%d, v%d" % (vt, vt, vt + 1))
            e.I("s_lshl_b32 s%d, s%d, 17" % (s0, S_WAVE))
            e.I("s_lshl_b32 s%d, s%d, 7" % (s1, S_J))
            e.I("s_add_u32 s%d, s%d, s%d" % (s0, s0, s1))
            e.I("s_lshl_b32 s%d, s%d, 14" % (s1, S_WAVE))
        ops.append(setup)
        for i in range(16):
            def f(i=i):
                self.sadd(s2, s0, i * 8192)
                e.I("s_add_u32 m0, s%d, %d" % (s1, L_WO + i * 1024))
                e.I("s_nop 0")
                self.wo_last = e.vm("buffer_load_dwordx4 v%d, %s, s%d offen lds" % (vt, sr(S_WO, 4), s2))
            ops.append(f)
        return ops

    def rot_step(self, dst, i, rot, n):
        e = self.e
        e.I("s_add_u32 s%d, s%d, %d" % (dst, rot, i))
        if n & (n - 1) == 0:
            e.I("s_and_b32 s%d, s%d, %d" % (dst, dst, n - 1))
        else:
            e.I("s_cmp_ge_u32 s%d, %d" % (dst, n))
            e.I("s_cselect_b32 s%d, %d, 0" % (S_BG2, n))
            e.I("s_sub_u32 s%d, s%d, s%d" % (dst, dst, S_BG2))

    def prep_load_ops(self, vt):
        e = self.e
        for q in range(3):
            p, row, c = vt + 3, vt + 4, vt + 5
            e.I("v_add_u32 v%d, %d, v%d" % (p, 64 * q, V_LANE))
            e.I("v_mul_u32_u24 v%d, 0x156, v%d" % (row, p))
            e.I("v_lshrrev_b32 v%d, 11, v%d" % (row, row))
            e.I("v_mul_u32_u24 v%d, 6, v%d" % (c, row))
            e.I("v_sub_u32 v%d, v%d, v%d" % (c, p, c))
            e.I("v_mul_u32_u24 v%d, 0xac0, v%d" % (vt + q, row))
            e.I("v_lshlrev_b32 v%d, 4, v%d" % (c, c))
            e.I("v_add_u32 v%d, v%d, v%d" % (vt + q, vt + q, c))
        e.I("s_lshl_b32 s%d, s%d, 3" % (S_T0, S_J4))
        e.I("s_lshl_b32 s%d, s%d, 1" % (S_T1, S_WAVE))
        e.I("s_add_u32 s%d, s%d, s%d" % (S_T0, S_T0, S_T1))
        e.I("s_mul_i32 s%d, s%d, %d" % (S_T0, S_T0, 32 * 2752))
        e.I("s_mul_i32 s%d, s%d, 96" % (S_T1, S_T))
        e.I("s_add_u32 s%d, s%d, s%d" % (S_T0, S_T0, S_T1))
        self.prep_ids = {}
        for i in range(2):
            self.sadd(S_T1, S_T0, 32 * i * 2752)
            for q in range(3):
                self.prep_ids[("w1", i)] = e.vm("buffer_load_dwordx4 %s, v%d, %s, s%d offen"
                                                % (ar(12 * i + 4 * q, 4), vt + q, sr(S_W1, 4), S_T1))
        e.I("v_lshrrev_b32 v%d, 3, v%d" % (vt + 3, V_LANE))
        e.I("v_lshlrev_b32 v%d, 12, v%d" % (vt + 3, vt + 3))
        e.I("v_and_b32 v%d, 7, v%d" % (vt + 4, V_LANE))
        e.I("v_lshlrev_b32 v%d, 4, v%d" % (vt + 4, vt + 4))
        e.I("v_add_u32 v%d, v%d, v%d" % (vt + 3, vt + 3, vt + 4))
        e.I("v_add_u32 v%d, 0x8000, v%d" % (vt + 4, vt + 3))
        for i in range(3):
            self.w2_prep_step(S_T0, i)
            e.I("s_lshl_b32 s%d, s%d, 16" % (S_T0, S_T0))
            e.I("s_lshl_b32 s%d, s%d, 7" % (S_T1, S_SB))
            e.I("s_add_u32 s%d, s%d, s%d" % (S_T0, S_T0, S_T1))
            for h in range(2):
                self.prep_ids[("w2", i)] = e.vm("buffer_load_dwordx4 %s, v%d, %s, s%d offen"
                                                % (ar(24 + 8 * i + 4 * h, 4), vt + 3 + h, sr(S_W2, 4), S_T0))

    def w2_prep_step(self, dst, i):
        e = self.e
        e.I("s_add_u32 s%d, s%d, %d" % (dst, S_WAVE, 4 * i))
        e.I("s_min_u32 s%d, s%d, 10" % (dst, dst))
        e.I("s_mul_i32 s%d, s%d, 11" % (S_BG2, S_J))
        e.I("s_add_u32 s%d, s%d, s%d" % (dst, dst, S_BG2))

    def prep_store_ops(self, vt, s0, s1):
        e = self.e
        wa, r1, r2, vl, t = vt, vt + 1, vt + 2, vt + 3, vt + 4
        ops = []

        def setup():
            e.I("v_lshlrev_b32 v%d, 4, v%d" % (vl, V_LANE))
            e.I("s_mul_i32 s%d, s%d, 3072" % (s0, S_WAVE))
            self.sadd(s0, s0, L_TRS)
            e.I("v_add_u32 v%d, s%d, v%d" % (wa, s0, vl))
            e.I("v_lshrrev_b32 v%d, 4, v%d" % (r1, V_LANE))
            e.I("v_lshlrev_b32 v%d, 3, v%d" % (r1, r1))
            e.I("v_bfe_u32 v%d, v%d, 2, 2" % (t, V_LANE))
            e.I("v_add_u32 v%d, v%d, v%d" % (r1, r1, t))
            e.I("v_mul_u32_u24 v%d, 96, v%d" % (r1, r1))
            e.I("v_and_b32 v%d, 3, v%d" % (t, V_LANE))
            e.I("v_lshlrev_b32 v%d, 3, v%d" % (t, t))
            e.I("v_add_u32 v%d, v%d, v%d" % (r1, r1, t))
            e.I("v_add_u32 v%d, s%d, v%d" % (r1, s0, r1))
            e.I("v_lshrrev_b32 v%d, 5, v%d" % (r2, V_LANE))
            e.I("v_lshlrev_b32 v%d, 3, v%d" % (r2, r2))
            e.I("v_bfe_u32 v%d, v%d, 2, 2" % (t, V_LANE))
            e.I("v_add_u32 v%d, v%d, v%d" % (r2, r2, t))
            e.I("v_lshlrev_b32 v%d, 7, v%d" % (r2, r2))
            e.I("v_bfe_u32 v%d, v%d, 4, 1" % (t, V_LANE))
            e.I("v_lshlrev_b32 v%d, 5, v%d" % (t, t))
            e.I("v_add_u32 v%d, v%d, v%d" % (r2, r2, t))
            e.I("v_and_b32 v%d, 3, v%d" % (t, V_LANE))
            e.I("v_lshlrev_b32 v%d, 3, v%d" % (t, t))
            e.I("v_add_u32 v%d, v%d, v%d" % (r2, r2, t))
            e.I("v_add_u32 v%d, s%d, v%d" % (r2, s0, r2))
        ops.append(setup)
        st = {}
        for i in range(2):
            def wr(i=i):
                e.wait_vm(self.prep_ids[("w1", i)])
                for q in range(3):
                    e.ds("ds_write_b128 v%d, %s offset:%d" % (wa, ar(12 * i + 4 * q, 4), q * 1024))

            def rd(i=i):
                for ft in range(3):
                    e.ds("ds_read_b64_tr_b16 %s, v%d offset:%d" % (ar(12 * i + 4 * ft, 2), r1, ft * 32))
                    st["r"] = e.ds("ds_read_b64_tr_b16 %s, v%d offset:%d" % (ar(12 * i + 4 * ft + 2, 2), r1, ft * 32 + 384))

            def sto(i=i):
                e.I("s_lshl_b32 s%d, s%d, 6" % (s0, S_T))
                e.I("s_lshl_b32 s%d, s%d, 3" % (s1, S_J4))
                e.I("s_add_u32 s%d, s%d, s%d" % (s0, s0, s1))
                e.I("s_lshl_b32 s%d, s%d, 1" % (s1, S_WAVE))
                e.I("s_add_u32 s%d, s%d, s%d" % (s0, s0, s1))
                e.I("s_add_u32 s%d, s%d, %d" % (s0, s0, i))
                e.I("s_mul_i32 s%d, s%d, 3072" % (s0, s0))
                self.sadd(s0, s0, WS_W1P)
                e.wait_ds(st["r"])
                for ft in range(3):
                    self.ws_store(ar(12 * i + 4 * ft, 4), 4, vl, s0, ft * 1024)
            ops += [wr, rd, sto]
        for i in range(3):
            def wr(i=i):
                e.wait_vm(self.prep_ids[("w2", i)])
                e.ds("ds_write_b128 v%d, %s offset:0" % (wa, ar(24 + 8 * i, 4)))
                e.ds("ds_write_b128 v%d, %s offset:1024" % (wa, ar(24 + 8 * i + 4, 4)))

            def rd(i=i):
                for b in range(2):
                    e.ds("ds_read_b64_tr_b16 %s, v%d offset:%d" % (ar(24 + 8 * i + 4 * b, 2), r2, 64 * b))
                    st["r"] = e.ds("ds_read_b64_tr_b16 %s, v%d offset:%d" % (ar(24 + 8 * i + 4 * b + 2, 2), r2, 64 * b + 512))

            def sto(i=i):
                self.w2_prep_step(s0, i)
                e.I("s_mul_i32 s%d, s%d, 88" % (s1, S_SB))
                e.I("s_add_u32 s%d, s%d, s%d" % (s0, s0, s1))
                e.I("s_lshl_b32 s%d, s%d, 11" % (s0, s0))
                self.sadd(s0, s0, WS_W2P)
                e.wait_ds(st["r"])
                for b in range(2):
                    self.ws_store(ar(24 + 8 * i + 4 * b, 4), 4, vl, s0, b * 1024)
            ops += [wr, rd, sto]

        def pk_rd():
            e.I("s_mul_i32 s%d, s%d, 6144" % (s0, S_RB))
            for i in range(2):
                e.I("s_lshl_b32 s%d, s%d, 1" % (s1, S_WAVE))
                e.I("s_add_u32 s%d, s%d, %d" % (s1, s1, i))
                e.I("s_min_u32 s%d, s%d, 5" % (s1, s1))
                e.I("s_lshl_b32 s%d, s%d, 10" % (s1, s1))
                e.I("s_add_u32 s%d, s%d, s%d" % (s1, s1, s0))
                e.I("v_add_u32 v%d, s%d, v%d" % (t, s1, vl))
                st["k%d" % i] = e.ds("ds_read_b128 %s, v%d offset:%d" % (ar(48 + 4 * i, 4), t, L_W))

        def pk_st():
            e.I("s_mul_i32 s%d, s%d, 6144" % (s0, S_RB))
            e.wait_ds(st["k1"])
            for i in range(2):
                e.I("s_lshl_b32 s%d, s%d, 1" % (s1, S_WAVE))
                e.I("s_add_u32 s%d, s%d, %d" % (s1, s1, i))
                e.I("s_min_u32 s%d, s%d, 5" % (s1, s1))
                e.I("s_lshl_b32 s%d, s%d, 10" % (s1, s1))
                e.I("s_add_u32 s%d, s%d, s%d" % (s1, s1, s0))
                e.I("s_mul_i32 s%d, s%d, 98304" % (S_BG2, S_HP))
                e.I("s_add_u32 s%d, s%d, s%d" % (s1, s1, S_BG2))
                self.sadd(s1, s1, WS_WPK)
                self.ws_store(ar(48 + 4 * i, 4), 4, vl, s1)
        self.pk_rd, self.pk_st = pk_rd, pk_st
        return ops

    def w1_frag_ops(self, vt, s0, s1):
        e = self.e
        ops = []

        def setup():
            e.I("v_lshlrev_b32 v%d, 4, v%d" % (vt, V_LANE))
            e.I("s_lshl_b32 s%d, s%d, 6" % (s0, S_T))
            e.I("s_lshl_b32 s%d, s%d, 4" % (s1, S_WAVE))
            e.I("s_add_u32 s%d, s%d, s%d" % (s0, s0, s1))
            e.I("s_mul_i32 s%d, s%d, 3072" % (s0, s0))
            self.sadd(s0, s0, WS_W1P)
        ops.append(setup)
        for i in range(16):
            for ft in range(3):
                def f(i=i, ft=ft):
                    if ft == 0:
                        self.rot_step(s1, i, S_ROT4, 16)
                        e.I("s_mul_i32 s%d, s%d, 3072" % (s1, s1))
                        e.I("s_add_u32 s%d, s%d, s%d" % (s1, s1, s0))
                    self.w1_last = self.ws_load(w1_reg(i, 4 * ft, 4), 4, vt, s1, ft * 1024)
                ops.append(f)
        return ops

    def w2_frag_ops(self, vt, s0, s1):
        e = self.e
        ops = []

        def setup():
            e.I("v_lshlrev_b32 v%d, 4, v%d" % (vt, V_LANE))
            e.I("s_lshl_b32 s%d, s%d, 10" % (s1, S_SH))
            e.I("v_xor_b32 v%d, 0x400, v%d" % (vt + 1, vt))
            e.I("v_add_u32 v%d, s%d, v%d" % (vt, s1, vt))
            e.I("v_subrev_u32 v%d, s%d, v%d" % (vt + 1, s1, vt + 1))
            e.I("s_mul_i32 s%d, s%d, 88" % (s0, S_SB))
            e.I("s_mul_i32 s%d, s%d, 22" % (s1, S_WAVE))
            e.I("s_add_u32 s%d, s%d, s%d" % (s0, s0, s1))
            e.I("s_lshl_b32 s%d, s%d, 11" % (s0, s0))
            self.sadd(s0, s0, WS_W2P)
        ops.append(setup)
        for i in range(22):
            for b in range(2):
                def f(i=i, b=b):
                    if b == 0:
                        self.rot_step(s1, i, S_ROT5, 22)
                        e.I("s_lshl_b32 s%d, s%d, 11" % (s1, s1))
                        e.I("s_add_u32 s%d, s%d, s%d" % (s1, s1, s0))
                    self.w2_last = self.ws_load(w2_reg(i, 4 * b, 4), 4, vt + b, s1)
                ops.append(f)
        return ops

    def dma_wpk_ops(self, vt, s0, s1):
        e = self.e
        ops = []

        def setup():
            e.I("v_lshlrev_b32 v%d, 4, v%d" % (vt, V_LANE))
            e.I("s_mul_i32 s%d, s%d, 24576" % (s1, S_WAVE))
            e.I("s_mul_i32 s%d, s%d, 98304" % (s0, S_HP))
            e.I("s_add_u32 s%d, s%d, s%d" % (s0, s0, s1))
            self.sadd(s0, s0, WS_WPK)
        ops.append(setup)
        for i in range(24):
            def f(i=i):
                e.I("s_add_u32 m0, s%d, %d" % (s1, L_W + i * 1024))
                self.sadd(S_BG2, s0, i * 1024)
                e.vm("buffer_load_dwordx4 v%d, %s, s%d offen lds" % (vt, sr(S_WS, 4), S_BG2))
            ops.append(f)
        return ops
```

```python
from g2_load import *


class P1(Load):
    def w_lane_addr(self, dst, t, hi_rows):
        e = self.e
        e.I("v_lshrrev_b32 v%d, 5, v%d" % (dst, V_LANE))
        e.I("v_mul_u32_u24 v%d, %d, v%d" % (dst, hi_rows, dst))
        e.I("v_bfe_u32 v%d, v%d, 2, 2" % (t, V_LANE))
        e.I("v_add_u32 v%d, v%d, v%d" % (dst, dst, t))
        e.I("v_mul_u32_u24 v%d, 192, v%d" % (dst, dst))
        e.I("v_bfe_u32 v%d, v%d, 4, 1" % (t, V_LANE))
        e.I("v_lshlrev_b32 v%d, 5, v%d" % (t, t))
        e.I("v_add_u32 v%d, v%d, v%d" % (dst, dst, t))
        e.I("v_and_b32 v%d, 3, v%d" % (t, V_LANE))
        e.I("v_lshlrev_b32 v%d, 3, v%d" % (t, t))
        e.I("v_add_u32 v%d, v%d, v%d" % (dst, dst, t))

    def p1_main(self, ACC, WF, VW0, VW1, second, xreg, pre_step, post_step):
        e = self.e

        def wread(kk, p):
            base = VW0 if kk < 16 else VW1
            d = WF + 12 * (kk & 1) + 4 * p
            off = L_W + (kk & 15) * 3072 + p * 64
            e.ds("ds_read_b64_tr_b16 %s, v%d offset:%d" % (vr(d, 2), base, off))
            return e.ds("ds_read_b64_tr_b16 %s, v%d offset:%d" % (vr(d + 2, 2), base, off + second))
        wid = {(0, p): wread(0, p) for p in range(3)}
        for kk in range(32):
            pre_step(kk)
            for p in range(3):
                e.wait_ds(wid[(kk, p)])
                c = vr(ACC + 16 * p, 16) if kk else "0"
                e.I("v_mfma_f32_32x32x16_bf16 %s, %s, %s, %s"
                    % (vr(ACC + 16 * p, 16), vr(WF + 12 * (kk & 1) + 4 * p, 4), xreg(kk), c))
                if kk + 1 < 32:
                    wid[(kk + 1, p)] = wread(kk + 1, p)
                post_step(kk, p)

    def p1_l0(self):
        e = self.e
        ACC, XA, XB, WF = VT, 58, 144, 208
        ST, CS, VW0, VW1, VWC, TMP = 122, 126, 129, 130, 131, 132
        VX, DW, PZ = 232, 240, 246
        e.I("v_lshrrev_b32 v%d, 5, v%d" % (TMP, V_LANE))
        e.I("v_and_b32 v%d, 31, v%d" % (VX, V_LANE))
        e.I("v_xor_b32 v%d, v%d, v%d" % (VX, VX, TMP))
        e.I("v_lshlrev_b32 v%d, 4, v%d" % (VX, VX))
        e.I("v_lshlrev_b32 v%d, 10, v%d" % (TMP, TMP))
        e.I("v_add_u32 v%d, v%d, v%d" % (VX, VX, TMP))
        for k in range(1, 8):
            e.I("v_xor_b32 v%d, %d, v%d" % (VX + k, k << 5, VX))
        e.I("s_lshl_b32 s%d, s%d, 7" % (S_B0, S_RB))
        e.I("s_lshl_b32 s%d, s%d, 5" % (S_T1, S_WAVE))
        e.I("s_add_u32 s%d, s%d, s%d" % (S_B0, S_B0, S_T1))
        e.I("s_lshl_b32 s%d, s%d, 10" % (S_B0, S_B0))
        e.I("s_lshl_b32 s%d, s%d, 14" % (S_B1X, S_WAVE))
        self.sadd(S_B1X, S_B1X, L_XS)
        xa_last = xb = None
        for i in range(16):
            self.sadd(S_T0, S_B0, i * 2048)
            e.I("s_add_u32 m0, s%d, %d" % (S_B1X, i * 1024))
            e.I("s_nop 0")
            xa_last = e.vm("buffer_load_dwordx4 v%d, %s, s%d offen lds" % (VX + (i & 7), sr(S_X, 4), S_T0))
        self.stamp("x dma issued")
        xb_id = []
        for i in range(16):
            self.sadd(S_T0, S_B0, i * 2048)
            xb_id.append(e.vm("buffer_load_dwordx4 %s, v%d, %s, s%d offen offset:512"
                              % (vr(XB + 4 * i, 4), VX + (i & 7), sr(S_X, 4), S_T0)))
        self.stamp("x raw issued")
        self.prologue_rest()
        t = TMP

        def resid():
            e.I("v_and_b32 v%d, 31, v%d" % (PZ + 7, V_LANE))
            e.I("s_lshl_b32 s%d, s%d, 6" % (S_BG0, S_SB))
            e.I("s_lshl_b32 s%d, s%d, 5" % (S_BG1, S_SH))
            e.I("s_add_u32 s%d, s%d, s%d" % (S_BG0, S_BG0, S_BG1))
            e.I("v_add_u32 v%d, s%d, v%d" % (PZ + 7, S_BG0, PZ + 7))
            e.I("v_lshlrev_b32 v%d, 1, v%d" % (PZ + 8, PZ + 7))
            e.vm("buffer_load_ushort v%d, v%d, %s, 0 offen" % (V_B2, PZ + 8, sr(S_B2, 4)))
            e.I("v_lshlrev_b32 v%d, 10, v%d" % (PZ + 7, PZ + 7))
            e.I("v_lshrrev_b32 v%d, 5, v%d" % (PZ + 8, V_LANE))
            e.I("v_lshlrev_b32 v%d, 3, v%d" % (PZ + 8, PZ + 8))
            e.I("v_add_u32 v%d, v%d, v%d" % (PZ + 7, PZ + 7, PZ + 8))
            e.I("s_lshl_b32 s%d, s%d, 7" % (S_BG0, S_J))
            e.I("s_lshl_b32 s%d, s%d, 6" % (S_BG1, S_KH))
            e.I("s_add_u32 s%d, s%d, s%d" % (S_BG0, S_BG0, S_BG1))
            for q in range(4):
                e.vm("buffer_load_dwordx2 %s, v%d, %s, s%d offen offset:%d"
                     % (vr(V_XR + 2 * q, 2), PZ + 7, sr(S_X, 4), S_BG0, 16 * q))
        self.bg_add(self.dma_w_ops(DW, S_BG0, S_BG1, S_T3))
        self.bg_add(self.poison_ops([("kv", [0])], PZ, S_BG0, S_BG1, S_T3))
        self.bg_add([resid])
        self.bg_emit(2)
        e.I("v_and_b32 v%d, 31, v%d" % (VX, V_LANE))
        e.I("v_lshrrev_b32 v%d, 5, v%d" % (t, V_LANE))
        e.I("v_and_b32 v%d, 15, v%d" % (VX + 1, VX))
        e.I("v_xor_b32 v%d, v%d, v%d" % (t, t, VX + 1))
        e.I("v_lshlrev_b32 v%d, 4, v%d" % (t, t))
        e.I("v_lshlrev_b32 v%d, 9, v%d" % (VX, VX))
        e.I("v_add_u32 v%d, v%d, v%d" % (VX, VX, t))
        e.I("v_add_u32 v%d, s%d, v%d" % (VX, S_B1X, VX))
        for k in range(1, 8):
            e.I("v_xor_b32 v%d, %d, v%d" % (VX + k, k << 5, VX))
        VWR = 141
        e.I("v_lshlrev_b32 v%d, 4, v%d" % (VWR, V_LANE))
        e.I("v_add_u32 v%d, s%d, v%d" % (VWR, S_B1X, VWR))
        for k in range(4):
            e.I("v_mov_b32 v%d, 0" % (ST + k))
        for k in range(3):
            e.I("v_mov_b32 v%d, 0" % (CS + k))

        def stats(base):
            for r in range(64):
                e.I("v_dot2_f32_bf16 v%d, v%d, s%d, v%d" % (ST + (r & 1), base + r, S_ONES, ST + (r & 1)))
                e.I("v_dot2_f32_bf16 v%d, v%d, v%d, v%d" % (ST + 2 + (r & 1), base + r, base + r, ST + 2 + (r & 1)))
                if r % 6 == 5:
                    self.bg_emit(1)

        def frags(base):
            for kk in range(16):
                e.ds("ds_read_b128 %s, v%d offset:%d" % (vr(base + 4 * kk, 4), VX + (kk & 7), (kk >> 3) * 256))
                if len(e.dsq) > 12:
                    e.wait_ds(e.dsq[-12])
                if kk % 8 == 7:
                    self.bg_emit(1)
            e.drain_ds()
        e.wait_vm(xa_last)
        frags(XA)
        for i in range(16):
            e.wait_vm(xb_id[i])
            e.ds("ds_write_b128 v%d, %s offset:%d" % (VWR, vr(XB + 4 * i, 4), i * 1024))
            if len(e.dsq) > 8:
                e.wait_ds(e.dsq[-8])
        stats(XA)
        frags(XB)
        stats(XB)
        self.bg_flush()
        g1_last = e.vmq[-1]
        self.stamp("P1 x ready L0")
        self.prep_load_ops(VX)
        self.w_lane_addr(VW0, t, 8)
        e.I("v_add_u32 v%d, 0xc000, v%d" % (VW1, VW0))
        e.I("s_mul_i32 s%d, s%d, %d" % (S_T0, S_WAVE, 128 * 192))
        e.I("v_add_u32 v%d, s%d, v%d" % (VWC, S_T0, VW0))
        for g in range(8):
            e.I("s_add_u32 s%d, s%d, %d" % (S_T0, S_RB, g))
            e.I("s_and_b32 s%d, s%d, 7" % (S_T0, S_T0))
            e.I("s_mul_i32 s%d, s%d, 3072" % (S_T0, S_T0))
            e.I("v_add_u32 v%d, s%d, v%d" % (t, S_T0, VWC))
            e.wait_vm(self.w_ids[g])
            d = WF + 12 * (g & 1)
            for p in range(3):
                e.ds("ds_read_b64_tr_b16 %s, v%d offset:%d" % (vr(d + 4 * p, 2), t, L_W + p * 64))
                e.ds("ds_read_b64_tr_b16 %s, v%d offset:%d" % (vr(d + 4 * p + 2, 2), t, L_W + p * 64 + 768))
            e.drain_ds()
            for k in range(4):
                for p in range(3):
                    e.I("v_dot2_f32_bf16 v%d, v%d, s%d, v%d" % (CS + p, d + 4 * p + k, S_ONES, CS + p))
        e.wait_vm(g1_last)
        e.I("s_barrier")
        self.signal(1, t, DW)
        self.stamp("P1 W landed L0")
        self.prep_ops = self.prep_store_ops(V_BG, S_BG0, S_BG1)
        marks = self.poison_ops([("o", [0]), ("st", [0]), ("h", [0])], PZ, S_BG0, S_BG1, S_T3)
        self.bg_add(marks + [self.prep_ops[0], self.pk_rd])
        nbg = len(self.bg)
        span = self.o.bg_span

        def post(kk, p):
            slot = 3 * kk + p
            want = min(nbg, -(-nbg * (slot + 1) // (3 * span)))
            self.bg_emit(want - (nbg - len(self.bg)))
        self.p1_main(ACC, WF, VW0, VW1, 768,
                     lambda kk: vr(XA + 4 * kk, 4) if kk < 16 else vr(XB + 4 * (kk - 16), 4),
                     lambda kk: None, post)
        self.bg_flush()
        g2_last = e.vmq[-1] if e.vmq else None
        self.stamp("P1 main done L0")
        t0, t1 = XA, XA + 1
        e.I("s_nop 3")
        for p in range(3):
            e.I("v_mov_b32 v%d, v%d" % (t0, CS + p))
            e.I("v_permlane32_swap_b32 v%d, v%d" % (CS + p, t0))
            e.I("v_add_f32 v%d, v%d, v%d" % (CS + p, CS + p, t0))
        e.I("v_and_b32 v%d, 31, v%d" % (t0, V_LANE))
        e.I("v_lshlrev_b32 v%d, 2, v%d" % (t0, t0))
        e.I("v_add_u32 v%d, 0x%x, v%d" % (t0, L_CSP, t0))
        e.I("s_mul_i32 s%d, s%d, 384" % (S_T0, S_WAVE))
        e.I("v_add_u32 v%d, s%d, v%d" % (t1, S_T0, t0))
        for p in range(3):
            e.ds("ds_write_b32 v%d, v%d offset:%d" % (t1, CS + p, p * 128))
        e.drain_vm()
        e.barrier()
        self.signal(3, t1, t1 + 1)
        CP = XA + 4
        for wv in range(4):
            for p in range(3):
                e.ds("ds_read_b32 v%d, v%d offset:%d" % (CP + wv * 3 + p, t0, wv * 384 + p * 128))
        e.I("v_add_f32 v%d, v%d, v%d" % (ST, ST, ST + 1))
        e.I("v_add_f32 v%d, v%d, v%d" % (ST + 2, ST + 2, ST + 3))
        for s in (ST, ST + 2):
            e.I("v_mov_b32 v%d, v%d" % (t1, s))
            e.I("v_permlane32_swap_b32 v%d, v%d" % (s, t1))
            e.I("v_add_f32 v%d, v%d, v%d" % (s, s, t1))
        e.drain_ds()
        for p in range(3):
            e.I("v_add_f32 v%d, v%d, v%d" % (CP + p, CP + p, CP + 3 + p))
            e.I("v_add_f32 v%d, v%d, v%d" % (CP + 6 + p, CP + 6 + p, CP + 9 + p))
            e.I("v_add_f32 v%d, v%d, v%d" % (CP + p, CP + p, CP + 6 + p))
            e.ds("ds_write_b32 v%d, v%d offset:%d" % (t0, CP + p, L_CS - L_CSP + p * 128))
        e.drain_ds()
        self.p1_finish(0, ACC, ST, ST + 2, 74, 106)
        e.I("v_lshlrev_b32 v%d, 16, v%d" % (V_B2, V_B2))

    def signal(self, bits, va, vd):
        e = self.e
        skip = e.new_label("nosig")
        e.I("s_cmp_lg_u32 s%d, 0" % S_WAVE)
        e.I("s_cbranch_scc1 %s" % skip)
        e.I("s_getreg_b32 s%d, hwreg(HW_REG_XCC_ID, 0, 4)" % S_T0)
        e.I("s_lshl_b32 s%d, s%d, 4" % (S_T0, S_T0))
        e.I("s_or_b32 s%d, s%d, %d" % (S_T0, S_T0, bits))
        e.I("v_mov_b32 v%d, s2" % va)
        e.I("v_mov_b32 v%d, s%d" % (vd, S_T0))
        e.I("buffer_store_byte v%d, v%d, %s, 0 offen sc1" % (vd, va, sr(S_DBG, 4)))
        e.label(skip)

    def p1_l1(self):
        e = self.e
        ACC, XF, R = VT, 58, 12
        WF = XF + 4 * R
        VX, VW0, VW1, TMP, VS = WF + 24, WF + 25, WF + 26, WF + 27, WF + 28
        assert VS <= 132 + 2
        e.I("v_lshlrev_b32 v%d, 4, v%d" % (VX, V_LANE))
        e.I("s_lshl_b32 s%d, s%d, 2" % (S_B0, S_RB))
        e.I("s_add_u32 s%d, s%d, s%d" % (S_B0, S_B0, S_WAVE))
        e.I("s_lshl_b32 s%d, s%d, 15" % (S_B0, S_B0))
        self.sadd(S_B0, S_B0, WS_X0)

        def xload(kk):
            self.sadd(S_T0, S_B0, (kk >> 2) * 4096)
            return self.ws_load(vr(XF + 4 * (kk % R), 4), 4, VX, S_T0, (kk & 3) * 1024)
        xid = {kk: xload(kk) for kk in range(R)}
        self.w_lane_addr(VW0, TMP, 4)
        e.I("v_add_u32 v%d, 0xc000, v%d" % (VW1, VW0))
        e.I("v_and_b32 v%d, 31, v%d" % (VS, V_LANE))
        e.I("v_lshlrev_b32 v%d, 3, v%d" % (VS, VS))
        e.I("v_lshrrev_b32 v%d, 5, v%d" % (TMP, V_LANE))
        e.I("v_lshlrev_b32 v%d, 9, v%d" % (TMP, TMP))
        e.I("v_add_u32 v%d, v%d, v%d" % (VS, VS, TMP))
        e.I("s_lshl_b32 s%d, s%d, 1" % (S_B1X, S_RB))
        e.I("s_add_u32 s%d, s%d, s%d" % (S_B1X, S_B1X, S_KH))
        e.I("s_lshl_b32 s%d, s%d, 13" % (S_B1X, S_B1X))
        e.I("s_lshl_b32 s%d, s%d, 8" % (S_T0, S_SH))
        e.I("s_add_u32 s%d, s%d, s%d" % (S_B1X, S_B1X, S_T0))
        self.sadd(S_B1X, S_B1X, WS_ST2)
        SG = XF + 32

        def sloads():
            for jj in range(8):
                self.sadd(S_T0, S_B1X, jj * 1024)
                last = self.ws_load(vr(SG + 2 * jj, 2), 2, VS, S_T0)
            return last

        def check_pair(kk):
            e.wait_vm(xid[kk + 1])
            regs = [XF + 4 * (kk % R) + k for k in range(4)] + [XF + 4 * ((kk + 1) % R) + k for k in range(4)]
            hi = min(kk + R - 2, 32) if kk else R

            def reissue(kk=kk, hi=hi):
                for k2 in range(kk, hi):
                    xload(k2)
            self.check(regs, reissue, "p1", TMP)
        check_pair(0)
        self.stamp("P1 first x L1")
        st = {}

        def post(kk, p):
            if p == 0 and kk % 2 == 0 and kk + 2 < 32:
                check_pair(kk + 2)
            if p == 2 and kk + R < 32:
                xid[kk + R] = xload(kk + R)
            if p == 2 and kk == 23:
                st["id"] = sloads()
        self.p1_main(ACC, WF, VW0, VW1, 8 * 192, lambda kk: vr(XF + 4 * (kk % R), 4), lambda kk: None, post)
        self.stamp("P1 main done L1")
        e.wait_vm(st["id"])
        self.check([SG + k for k in range(16)], sloads, "st2", TMP)
        for jj in range(1, 8):
            e.I("v_add_f32 v%d, v%d, v%d" % (SG, SG, SG + 2 * jj))
            e.I("v_add_f32 v%d, v%d, v%d" % (SG + 1, SG + 1, SG + 2 * jj + 1))
        for s in (SG, SG + 1):
            e.I("v_mov_b32 v%d, v%d" % (TMP, s))
            e.I("v_permlane32_swap_b32 v%d, v%d" % (s, TMP))
            e.I("v_add_f32 v%d, v%d, v%d" % (s, s, TMP))
        e.barrier()
        self.p1_finish(1, ACC, SG, SG + 1, 58, 106)

    def p1_finish(self, l, ACC, SUM, SSQ, F, G):
        e = self.e
        CSR, PK = F, F + 16
        t0, t1, MU, RS, RQ = G, G + 1, G + 2, G + 3, G + 4
        e.I("v_lshrrev_b32 v%d, 5, v%d" % (t1, V_LANE))
        e.I("v_lshlrev_b32 v%d, 4, v%d" % (t1, t1))
        e.I("v_add_u32 v%d, 0x%x, v%d" % (t1, L_CS, t1))

        def csread(p):
            for q in range(4):
                last = e.ds("ds_read_b128 %s, v%d offset:%d" % (vr(CSR + 4 * q, 4), t1, p * 128 + q * 32))
            return last
        c = csread(1)
        e.I("v_mul_f32 v%d, 0x%x, v%d" % (MU, f32(1.0 / 512), SUM))
        e.I("v_mul_f32 v%d, 0x%x, v%d" % (t0, f32(1.0 / 512), SSQ))
        e.I("v_fma_f32 v%d, -v%d, v%d, v%d" % (t0, MU, MU, t0))
        e.I("v_max_f32 v%d, 0, v%d" % (t0, t0))
        e.I("v_add_f32 v%d, 0x%x, v%d" % (t0, f32(1e-5), t0))
        e.I("v_rsq_f32 v%d, v%d" % (RS, t0))
        e.I("v_mul_f32 v%d, 0x%x, v%d" % (RQ, f32(SCALE_Q), RS))
        va, vk, vv = G + 5, G + 6, G + 7
        e.I("v_lshlrev_b32 v%d, 4, v%d" % (va, V_LANE))

        def tile(p, dst):
            sc = RQ if p == 0 else RS
            for r in range(16):
                e.I("v_fma_f32 v%d, -v%d, v%d, v%d" % (ACC + 16 * p + r, MU, CSR + r, ACC + 16 * p + r))
            nxt = {1: 2, 2: 0}.get(p)
            cid = csread(nxt) if nxt is not None else None
            for r in range(16):
                e.I("v_mul_f32 v%d, v%d, v%d" % (ACC + 16 * p + r, ACC + 16 * p + r, sc))
            for r in range(8):
                e.I("v_cvt_pk_bf16_f32 v%d, v%d, v%d" % (dst + r, ACC + 16 * p + 2 * r, ACC + 16 * p + 2 * r + 1))
            return cid
        self.off_kv(S_T0, l)
        e.wait_ds(c)
        c = tile(1, PK)
        for p in range(2):
            self.sadd(S_T1, S_T0, p * 65536)
            self.ws_store(vr(PK + 4 * p, 4), 4, va, S_T1)
        e.wait_ds(c)
        c = tile(2, PK + 8)
        for p in range(2, 4):
            self.sadd(S_T1, S_T0, p * 65536)
            self.ws_store(vr(PK + 4 * p, 4), 4, va, S_T1)
        e.I("s_add_u32 s%d, s%d, 8" % (S_T0, S_WAVE))
        e.I("s_mul_i32 s%d, s%d, %d" % (S_T0, S_T0, KVB))
        e.I("v_add_u32 v%d, s%d, v%d" % (vk, S_T0, va))
        self.v_lanepos(vv, t0)
        e.I("v_add_u32 v%d, s%d, v%d" % (vv, S_T0, vv))
        e.wait_ds(c)
        for p in range(4):
            e.ds("ds_write_b128 v%d, %s offset:%d" % (vk if p < 2 else vv, vr(PK + 4 * p, 4), L_KV + p * KVP))
        tile(0, VT)
        for k in range(4):
            e.I("v_mov_b32 v%d, s%d" % (CSR + k, S_ONES))
        e.ds("ds_write_b128 v%d, %s offset:%d" % (va, vr(CSR, 4), L_ONES))

    def v_lanepos(self, dst, tmp):
        e = self.e
        e.I("v_lshrrev_b32 v%d, 5, v%d" % (dst, V_LANE))
        e.I("v_mul_u32_u24 v%d, 576, v%d" % (dst, dst))
        e.I("v_and_b32 v%d, 31, v%d" % (tmp, V_LANE))
        e.I("v_lshlrev_b32 v%d, 4, v%d" % (tmp, tmp))
        e.I("v_add_u32 v%d, v%d, v%d" % (dst, dst, tmp))
```

```python
from g2_p1 import *


class P2(P1):
    def p2(self, l):
        e = self.e
        QF = VT
        S = [18, 34]
        O, NEGM, P = 50, 66, 82
        KF = [90, 94]
        VF = [98, 106]
        S3 = [18, 34, 50]
        KA = 66
        M0, M1, T0, T1, NINF = 114, 115, 116, 117, 118
        VK, VV, VSTEP, VVB, VG = 120, 121, 122, 123, 124
        HALO = S[0]
        if l == 0:
            self.set_masks()
            for f in self.poison_ops([("u", [0, 1]), ("x0", [0]), ("st2", [0]), ("kv", [1]), ("o", [1]), ("st", [1]),
                                      ("h", [1])], 126, S_BG0, S_BG1, S_T3):
                f()
            for f in self.prep_ops[1:] + [self.pk_st]:
                f()
        e.I("v_lshlrev_b32 v%d, 4, v%d" % (VG, V_LANE))
        e.I("s_lshl_b32 s%d, s%d, 2" % (S_B0, S_HP))
        e.I("s_add_u32 s%d, s%d, s%d" % (S_B0, S_B0, S_WAVE))
        e.I("s_lshl_b32 s%d, s%d, 16" % (S_B0, S_B0))
        if WS_KV[l]:
            self.sadd(S_B0, S_B0, WS_KV[l])
        e.I("s_lshl_b32 s%d, s%d, 2" % (S_B1X, S_RB))

        def halo_loads():
            for b in range(8):
                e.I("s_add_u32 s%d, s%d, %d" % (S_T0, S_B1X, b))
                e.I("s_max_u32 s%d, s%d, 8" % (S_T0, S_T0))
                e.I("s_sub_u32 s%d, s%d, 8" % (S_T0, S_T0))
                e.I("s_lshl_b32 s%d, s%d, 10" % (S_T0, S_T0))
                e.I("s_add_u32 s%d, s%d, s%d" % (S_T0, S_T0, S_B0))
                last = self.ws_load(vr(HALO + 4 * b, 4), 4, VG, S_T0)
            return last
        if l == 0:
            self.init_check(T0, T1, 1, local=True)
        last = halo_loads()
        self.v_lanepos(VV, T0)
        e.I("s_cmp_lt_u32 s%d, 2" % S_WAVE)
        e.I("s_cselect_b64 vcc, -1, 0")
        e.I("v_cndmask_b32 v%d, v%d, v%d, vcc" % (M1, VV, VG))
        e.I("s_mul_i32 s%d, s%d, %d" % (S_T0, S_WAVE, KVP))
        e.I("v_add_u32 v%d, s%d, v%d" % (M1, S_T0, M1))
        e.I("s_mul_i32 s%d, s%d, %d" % (S_B2X, S_WAVE, KVB))
        e.I("v_add_u32 v%d, s%d, v%d" % (VK, S_B2X, VG))
        e.I("v_bfe_u32 v%d, v%d, 1, 1" % (VVB, V_LANE))
        e.I("v_mul_u32_u24 v%d, 576, v%d" % (VVB, VVB))
        e.I("v_lshrrev_b32 v%d, 5, v%d" % (T0, V_LANE))
        e.I("v_lshlrev_b32 v%d, 2, v%d" % (T0, T0))
        e.I("v_bfe_u32 v%d, v%d, 2, 2" % (T1, V_LANE))
        e.I("v_add_u32 v%d, v%d, v%d" % (T0, T0, T1))
        e.I("v_lshlrev_b32 v%d, 4, v%d" % (T0, T0))
        e.I("v_add_u32 v%d, v%d, v%d" % (VVB, VVB, T0))
        e.I("v_and_b32 v%d, 1, v%d" % (T0, V_LANE))
        e.I("v_lshlrev_b32 v%d, 3, v%d" % (T0, T0))
        e.I("v_add_u32 v%d, v%d, v%d" % (VVB, VVB, T0))
        e.I("s_mul_i32 s%d, s%d, %d" % (S_T0, S_NSKIP, KVB))
        e.I("s_add_u32 s%d, s%d, s%d" % (S_T0, S_T0, S_B2X))
        e.I("s_add_u32 s%d, s%d, %d" % (S_T0, S_T0, L_KV + 2 * KVP))
        e.I("v_add_u32 v%d, s%d, v%d" % (VVB, S_T0, VVB))
        e.I("v_bfe_u32 v%d, v%d, 4, 1" % (T0, V_LANE))
        e.I("v_cmp_eq_u32 vcc, 1, v%d" % T0)
        e.I("v_mov_b32 v%d, %d" % (T1, L_ONES))
        e.I("v_cndmask_b32 v%d, v%d, v%d, vcc" % (VVB, VVB, T1))
        e.I("v_mov_b32 v%d, %d" % (T0, KVB))
        e.I("v_mov_b32 v%d, 0" % T1)
        e.I("v_cndmask_b32 v%d, v%d, v%d, vcc" % (VSTEP, T0, T1))
        e.I("v_mov_b32 v%d, 0x%x" % (NINF, NEG_INF))
        e.wait_vm(last)
        self.check([HALO + k for k in range(32)], halo_loads, "halo", T0)

        for b in range(8):
            e.ds("ds_write_b128 v%d, %s offset:%d" % (M1, vr(HALO + 4 * b, 4), L_KV + b * KVB))
        self.bg_flush()
        ops = self.dma_wo_ops(V_BG, S_BG0, S_BG1, S_T3)
        wo_setup, wo_ops = ops[0], ops[1:]
        self.bg_add([wo_setup] + wo_ops)
        e.barrier()
        if l == 0:
            self.signal(7, T0, T1)
        self.stamp("P2 halo done L%d" % l)
        allops = list(self.bg)
        self.bg.clear()
        order = []
        for h in range(2):
            order += [(h, 1, 3, 0), (h, 1, 6, 0)]
            order += [(h, 2, jj, half) for jj in range(9) for half in range(2)]
        slots = {k: [] for k in order}
        if l == 0:
            first = [k for k in order if k[0] == 0]
            second = [k for k in order if k[0] == 1]
            w1ops = self.w1_frag_ops(V_BG + 3, S_BG0, S_BG1)
            for oo, keys in ((allops, first), (w1ops, second)):
                per = -(-len(oo) // len(keys))
                for n, f in enumerate(oo):
                    slots[keys[n // per]].append(f)
        else:
            per = -(-len(allops) // len(order))
            for n, f in enumerate(allops):
                slots[order[n // per]].append(f)

        def run_slot(key):
            for f in slots.get(key, []):
                f()

        def replay(h, ps, en):
            saved = (getattr(self, "wo_last", None), getattr(self, "w1_last", None))
            for jj in range(en):
                for half in range(2):
                    run_slot((h, ps, jj, half))
            self.wo_last, self.w1_last = saved

        def kread(h, jj, dst):
            return e.ds("ds_read_b128 %s, v%d offset:%d" % (vr(dst, 4), VK, L_KV + h * KVP + jj * KVB))

        def mask(s, jj):
            for r in range(16):
                if jj == 8:
                    e.I("v_cndmask_b32 v%d, v%d, v%d, %s" % (s + r, NINF, s + r, sr(S_MASK + 2 * r, 2)))
                else:
                    e.I("v_cndmask_b32 v%d, v%d, v%d, %s" % (s + r, s + r, NINF, sr(S_MASK + 2 * r, 2)))

        def dispatch(labels):
            e.I("s_cmp_lg_u32 s%d, 0" % S_NSKIP)
            e.I("s_cbranch_scc1 %s" % labels[0])
            e.begin_stub()
            e.label(labels[0])
            for en in range(1, 9):
                e.I("s_cmp_eq_u32 s%d, %d" % (S_NSKIP, en))
                e.I("s_cbranch_scc1 %s" % labels[en])
            e.I("s_branch %s" % labels[8])
            e.end_stub()

        for h in range(2):
            kid = [kread(h, jj, KA + 4 * jj) for jj in range(9)]
            e.I("v_mov_b32 v%d, v%d" % (M0, NINF))
            e.I("v_mov_b32 v%d, v%d" % (M1, NINF))

            def qk1(jj):
                e.I("v_mfma_f32_32x32x16_bf16 %s, %s, %s, 0"
                    % (vr(S3[jj % 3], 16), vr(KA + 4 * jj, 4), vr(QF + 4 * h, 4)))
            stubs = [e.new_label("a1s") for _ in range(9)]
            body = [e.new_label("a1b") for _ in range(9)]
            e.drain_ds()
            dispatch(stubs)
            for en in range(9):
                if en:
                    e.begin_stub()
                    e.label(stubs[en])
                    replay(h, 1, en)
                qk1(en)
                if en < 8:
                    qk1(en + 1)
                e.I("s_nop 7")
                e.I("s_nop 1")
                if en:
                    e.I("s_branch %s" % body[en])
                    e.end_stub()
            for jj in range(9):
                e.label(body[jj])
                if jj + 2 <= 8:
                    qk1(jj + 2)
                s = S3[jj % 3]
                if jj in (0, 8):
                    mask(s, jj)
                for r in range(0, 16, 4):
                    e.I("v_max3_f32 v%d, v%d, v%d, v%d" % (M0, M0, s + r, s + r + 1))
                    e.I("v_max3_f32 v%d, v%d, v%d, v%d" % (M1, M1, s + r + 2, s + r + 3))
                run_slot((h, 1, jj, 0))
            self.stamp("P2 pass1 h%d L%d" % (h, l))
            e.I("v_mov_b32 v%d, v%d" % (VV, VVB))
            if h == 1:
                e.I("v_mov_b32 v%d, %d" % (T0, KVP))
                e.I("v_cmp_ne_u32 vcc, 0, v%d" % VSTEP)
                e.I("v_mov_b32 v%d, 0" % T1)
                e.I("v_cndmask_b32 v%d, v%d, v%d, vcc" % (T0, T1, T0))
                e.I("v_add_u32 v%d, v%d, v%d" % (VV, VV, T0))
            e.I("v_max_f32 v%d, v%d, v%d" % (M0, M0, M1))
            e.I("v_mov_b32 v%d, v%d" % (T0, M0))
            e.I("v_permlane32_swap_b32 v%d, v%d" % (M0, T0))
            e.I("v_max_f32 v%d, v%d, v%d" % (M0, M0, T0))
            for r in range(16):
                e.I("v_mul_f32 v%d, -1.0, v%d" % (NEGM + r, M0))
            if l == 0 and h == 0:
                e.I("v_lshlrev_b32 v%d, 2, v%d" % (125, V_LANE))
                dbg_id = e.vm("buffer_load_dword v%d, v%d, %s, 0 offen sc1" % (119, 125, sr(S_DBG, 4)))
            stubs = [e.new_label("a2s") for _ in range(9)]
            body = [e.new_label("a2b") for _ in range(9)]
            dispatch(stubs)

            def vread(jj):
                d = VF[jj & 1]
                for k in range(4):
                    last = e.ds("ds_read_b64_tr_b16 %s, v%d offset:%d" % (vr(d + 2 * k, 2), VV, 128 * k))
                return last

            def qk2(jj):
                e.I("v_mfma_f32_32x32x16_bf16 %s, %s, %s, %s"
                    % (vr(S[jj & 1], 16), vr(KF[jj & 1], 4), vr(QF + 4 * h, 4), vr(NEGM, 16)))
            for en in range(9):
                if en:
                    e.begin_stub()
                    e.label(stubs[en])
                    replay(h, 2, en)
                    for r in range(16):
                        e.I("v_mov_b32 v%d, 0" % (O + r))
                k0 = kread(h, en, KF[en & 1])
                if en < 8:
                    kread(h, en + 1, KF[(en + 1) & 1])
                vread(en)
                e.wait_ds(k0)
                qk2(en)
                e.I("s_nop 7")
                e.I("s_nop 3")
                if en:
                    e.I("s_branch %s" % body[en])
                    e.end_stub()
            for jj in range(9):
                e.label(body[jj])
                s = S[jj & 1]
                d = VF[(jj + 1) & 1]

                def ex(lo, hi):
                    for r in range(lo, hi):
                        e.I("v_exp_f32 v%d, v%d" % (s + r, s + r))

                def cv(half):
                    for r in range(4):
                        e.I("v_cvt_pk_bf16_f32 v%d, v%d, v%d"
                            % (P + 4 * half + r, s + 8 * half + 2 * r, s + 8 * half + 2 * r + 1))

                def vrd(k):
                    e.I("ds_read_b64_tr_b16 %s, v%d offset:%d" % (vr(d + 2 * k, 2), VV, 128 * k))

                def pv(half):
                    c = "0" if (jj == 0 and half == 0) else vr(O, 16)
                    e.I("v_mfma_f32_32x32x16_bf16 %s, %s, %s, %s"
                        % (vr(O, 16), vr(VF[jj & 1] + 4 * half, 4), vr(P + 4 * half, 4), c))
                if jj in (0, 8):
                    mask(s, jj)
                ex(0, 4)
                n_new = 0
                if jj < 8:
                    e.I("s_waitcnt lgkmcnt(4)")
                    qk2(jj + 1)
                ex(4, 8)
                if jj + 2 <= 8:
                    e.I("ds_read_b128 %s, v%d offset:%d" % (vr(KF[jj & 1], 4), VK, L_KV + h * KVP + (jj + 2) * KVB))
                    n_new += 1
                cv(0)
                ex(8, 10)
                e.I("s_waitcnt lgkmcnt(%d)" % n_new)
                pv(0)
                run_slot((h, 2, jj, 0))
                ex(10, 13)
                if jj < 8:
                    e.I("v_add_u32 v%d, v%d, v%d" % (VV, VV, VSTEP))
                    vrd(0)
                    vrd(1)
                ex(13, 16)
                run_slot((h, 2, jj, 1))
                cv(1)
                if jj < 8:
                    vrd(2)
                    vrd(3)
                pv(1)
            e.dsq = []
            e.drain_ds()
            self.stamp("P2 pass2 h%d L%d" % (h, l))
            e.I("v_rcp_f32 v%d, v%d" % (T0, O + 8))
            for r in range(8):
                e.I("v_mul_f32 v%d, v%d, v%d" % (O + r, O + r, T0))
            for r in range(4):
                e.I("v_cvt_pk_bf16_f32 v%d, v%d, v%d" % (P + r, O + 2 * r, O + 2 * r + 1))
            if h == 1:
                self.bg_flush()
            self.off_o(S_T0, l)
            self.ws_store_near([(vr(P, 4), 4, VG, S_T0, h * 1024)])
            if l == 0 and h == 0:
                e.wait_vm(dbg_id)
                e.I("v_mov_b32 v%d, v119" % T1)
                self.init_check(T0, T1, 7, preloaded=True)

    def init_check(self, T0, T1, bits, preloaded=False, local=False):
        e = self.e
        lp, dn = e.new_label("init"), e.new_label("initdone")
        m = bits * 0x01010101
        first = e.new_label("initchk")
        e.I("v_lshlrev_b32 v%d, 2, v%d" % (T0, V_LANE))
        if preloaded:
            e.I("s_branch %s" % first)
        e.label(lp)
        e.I("buffer_load_dword v%d, v%d, %s, 0 offen sc1" % (T1, T0, sr(S_DBG, 4)))
        e.I("s_waitcnt vmcnt(0)")
        e.label(first)
        e.I("v_and_b32 v%d, 0x%x, v%d" % (125, m, T1))
        e.I("v_cmp_ne_u32 vcc, 0x%x, v%d" % (m, 125))
        e.I("s_cbranch_vccz %s" % dn)
        e.I("s_cmp_eq_u32 s%d, 0" % S_BUDGET)
        e.I("s_cbranch_scc1 %s" % dn)
        e.I("s_sub_u32 s%d, s%d, 1" % (S_BUDGET, S_BUDGET))
        e.I("s_branch %s" % lp)
        e.label(dn)
        if not preloaded:
            e.vmq = []
        if not local:
            return
        e.I("s_and_b32 s%d, s2, 3" % S_T0)
        e.I("s_lshl_b32 s%d, s%d, 3" % (S_T0, S_T0))
        e.I("v_lshrrev_b32 v%d, s%d, v%d" % (T1, S_T0, T1))
        e.I("v_and_b32 v%d, 0xf0, v%d" % (T1, T1))
        e.I("s_getreg_b32 s%d, hwreg(HW_REG_XCC_ID, 0, 4)" % S_T0)
        e.I("s_lshl_b32 s%d, s%d, 4" % (S_T0, S_T0))
        e.I("v_cmp_ne_u32 vcc, s%d, v%d" % (S_T0, T1))
        e.I("s_bitcmp1_b32 s2, 2")
        e.I("s_mov_b32 s%d, 0x55555555" % S_T0)
        e.I("s_cselect_b32 s%d, 0xaaaaaaaa, s%d" % (S_T0, S_T0))
        e.I("s_and_b32 s%d, vcc_lo, s%d" % (S_T1, S_T0))
        e.I("s_and_b32 s%d, vcc_hi, s%d" % (S_T2, S_T0))
        e.I("s_or_b32 s%d, s%d, s%d" % (S_T1, S_T1, S_T2))
        e.I("s_cmp_eq_u32 s%d, 0" % S_T1)
        e.I("s_cselect_b32 s%d, %d, 0" % (S_LOCAL, 0 if self.o.no_local else 1))
```

```python
from g2_p2 import *


class P345(P2):
    def row_stats(self, X, SU, T0):
        e = self.e
        SQ = SU + 1
        e.I("v_add_f32 v%d, v%d, v%d" % (SU, X, X + 1))
        e.I("v_mul_f32 v%d, v%d, v%d" % (SQ, X, X))
        e.I("v_fmac_f32 v%d, v%d, v%d" % (SQ, X + 1, X + 1))
        for r in range(2, 16):
            e.I("v_add_f32 v%d, v%d, v%d" % (SU, SU, X + r))
            e.I("v_fmac_f32 v%d, v%d, v%d" % (SQ, X + r, X + r))
        for s in (SU, SQ):
            e.I("v_mov_b32 v%d, v%d" % (T0, s))
            e.I("v_permlane32_swap_b32 v%d, v%d" % (s, T0))
            e.I("v_add_f32 v%d, v%d, v%d" % (s, s, T0))

    def unpack_xr(self, dst):
        e = self.e
        for r in range(8):
            e.I("v_lshlrev_b32 v%d, 16, v%d" % (dst + 2 * r, V_XR + r))
            e.I("v_and_b32 v%d, 0xffff0000, v%d" % (dst + 2 * r + 1, V_XR + r))

    def p3(self, l):
        e = self.e
        ACC = VT
        OF = 42
        AF = 106
        VG, VA0, VA1, T0, T1 = 122, 123, 124, 125, 126
        e.I("v_lshlrev_b32 v%d, 4, v%d" % (VG, V_LANE))
        e.I("s_lshl_b32 s%d, s%d, 1" % (S_B0, S_SB))
        e.I("s_add_u32 s%d, s%d, s%d" % (S_B0, S_B0, S_SH))
        e.I("s_lshl_b32 s%d, s%d, 15" % (S_B0, S_B0))
        e.I("s_lshl_b32 s%d, s%d, 14" % (S_T0, S_KH))
        e.I("s_add_u32 s%d, s%d, s%d" % (S_B0, S_B0, S_T0))
        self.sadd(S_B0, S_B0, WS_O[l])

        def oload(i):
            if i % 4 == 0:
                self.sadd(S_T0, S_B0, (i >> 2) * 4096)
            return self.ws_load(vr(OF + 4 * i, 4), 4, VG, S_T0, (i & 3) * 1024)
        oid = [oload(i) for i in range(16)]
        e.I("v_lshrrev_b32 v%d, 5, v%d" % (VA0, V_LANE))
        e.I("v_lshlrev_b32 v%d, 3, v%d" % (VA0, VA0))
        e.I("v_bfe_u32 v%d, v%d, 2, 2" % (T0, V_LANE))
        e.I("v_add_u32 v%d, v%d, v%d" % (VA0, VA0, T0))
        e.I("v_lshlrev_b32 v%d, 7, v%d" % (VA0, VA0))
        e.I("v_bfe_u32 v%d, v%d, 3, 1" % (T0, V_LANE))
        e.I("v_xor_b32 v%d, s%d, v%d" % (T0, S_KH, T0))
        e.I("v_lshlrev_b32 v%d, 6, v%d" % (T0, T0))
        e.I("v_add_u32 v%d, v%d, v%d" % (VA0, VA0, T0))
        e.I("v_bfe_u32 v%d, v%d, 4, 1" % (T0, V_LANE))
        e.I("v_lshlrev_b32 v%d, 5, v%d" % (T0, T0))
        e.I("v_add_u32 v%d, v%d, v%d" % (VA0, VA0, T0))
        e.I("v_and_b32 v%d, 3, v%d" % (T0, V_LANE))
        e.I("v_lshlrev_b32 v%d, 3, v%d" % (T0, T0))
        e.I("v_add_u32 v%d, v%d, v%d" % (VA0, VA0, T0))
        e.I("s_lshl_b32 s%d, s%d, 15" % (S_T0, S_KH))
        self.sadd(S_T0, S_T0, L_WO)
        e.I("v_add_u32 v%d, s%d, v%d" % (VA0, S_T0, VA0))
        e.I("v_xor_b32 v%d, 64, v%d" % (VA1, VA0))
        if l == 0:
            self.bg_add(self.w2_frag_ops(V_BG + 3, S_BG0, S_BG1))
            self.bg_emit(1 + self.o.w2_split[0])
        e.wait_vm(self.wo_last)
        e.barrier()

        def aread(i, a):
            d = AF + 8 * (i & 1) + 4 * a
            e.ds("ds_read_b64_tr_b16 %s, v%d offset:%d" % (vr(d, 2), VA0 if a == 0 else VA1, i * 2048))
            return e.ds("ds_read_b64_tr_b16 %s, v%d offset:%d" % (vr(d + 2, 2), VA0 if a == 0 else VA1, i * 2048 + 512))

        def chk(i):
            e.wait_vm(oid[i + 3])

            def reissue(i=i):
                for k in range(i, 16):
                    if k == i and i % 4:
                        self.sadd(S_T0, S_B0, (k >> 2) * 4096)
                    oload(k)
            self.check([OF + 4 * i + k for k in range(16)], reissue, "p3", T0)
        aid = {(0, a): aread(0, a) for a in range(2)}
        chk(0)
        self.stamp("P3 first o L%d" % l)
        for i in range(16):
            for a in range(2):
                e.wait_ds(aid[(i, a)])
                c = vr(ACC + 16 * a, 16) if i else "0"
                e.I("v_mfma_f32_32x32x16_bf16 %s, %s, %s, %s" % (vr(ACC + 16 * a, 16), vr(AF + 8 * (i & 1) + 4 * a, 4),
                                                                vr(OF + 4 * i, 4), c))
                if i + 1 < 16:
                    aid[(i + 1, a)] = aread(i + 1, a)
            if i % 4 == 0 and i + 4 < 16:
                chk(i + 4)
        self.stamp("P3 main done L%d" % l)
        e.I("s_xor_b32 s%d, s%d, 2" % (S_T0, S_WAVE))
        e.I("s_lshl_b32 s%d, s%d, 12" % (S_T0, S_T0))
        self.sadd(S_T0, S_T0, L_EX)
        e.I("v_add_u32 v%d, s%d, v%d" % (T0, S_T0, VG))
        for q in range(4):
            e.ds("ds_write_b128 v%d, %s offset:%d" % (T0, vr(ACC + 16 + 4 * q, 4), q * 1024))
        XU = OF
        self.unpack_xr(XU)
        e.I("s_lshl_b32 s%d, s%d, 12" % (S_T0, S_WAVE))
        self.sadd(S_T0, S_T0, L_EX)
        e.I("v_add_u32 v%d, s%d, v%d" % (T0, S_T0, VG))
        X1 = ACC
        for r in range(16):
            e.I("v_add_f32 v%d, v%d, v%d" % (X1 + r, X1 + r, XU + r))
        e.barrier()
        for q in range(4):
            e.ds("ds_read_b128 %s, v%d offset:%d" % (vr(ACC + 16 + 4 * q, 4), T0, q * 1024))
        VS = OF + 20
        e.I("v_and_b32 v%d, 31, v%d" % (VS, V_LANE))
        e.I("v_lshlrev_b32 v%d, 3, v%d" % (VS, VS))
        e.I("v_lshrrev_b32 v%d, 5, v%d" % (T1, V_LANE))
        e.I("v_lshlrev_b32 v%d, 9, v%d" % (T1, T1))
        e.I("v_add_u32 v%d, v%d, v%d" % (VS + 1, VS, T1))
        self.off_st(S_T1, WS_ST[l])
        e.I("s_lshl_b32 s%d, s%d, 13" % (S_B0, S_SB))
        e.I("s_lshl_b32 s%d, s%d, 8" % (S_T0, S_SH))
        e.I("s_add_u32 s%d, s%d, s%d" % (S_B0, S_B0, S_T0))
        self.sadd(S_B0, S_B0, WS_ST[l])
        e.drain_ds()
        for r in range(16):
            e.I("v_add_f32 v%d, v%d, v%d" % (X1 + r, X1 + r, ACC + 16 + r))
        for r in range(8):
            e.I("v_cvt_pk_bf16_f32 v%d, v%d, v%d" % (V_XR + r, X1 + 2 * r, X1 + 2 * r + 1))
        self.unpack_xr(X1)
        SU = OF + 16
        self.row_stats(X1, SU, T0)
        self.ws_store_near([(vr(SU, 2), 2, VS, S_T1, 0)])
        SG = OF + 24

        def sloads():
            for jj in range(8):
                self.sadd(S_T0, S_B0, jj * 1024)
                last = self.ws_load(vr(SG + 2 * jj, 2), 2, VS + 1, S_T0)
            return last
        last = sloads()
        if l == 0:
            self.bg_emit(self.o.w2_split[1])
        e.wait_vm(last)
        self.stamp("P3 stats sent L%d" % l)
        self.check([SG + k for k in range(16)], sloads, "st", T0)
        self.stamp("P3 stats got L%d" % l)
        for jj in range(1, 8):
            e.I("v_add_f32 v%d, v%d, v%d" % (SG, SG, SG + 2 * jj))
            e.I("v_add_f32 v%d, v%d, v%d" % (SG + 1, SG + 1, SG + 2 * jj + 1))
        for s in (SG, SG + 1):
            e.I("v_mov_b32 v%d, v%d" % (T0, s))
            e.I("v_permlane32_swap_b32 v%d, v%d" % (s, T0))
            e.I("v_add_f32 v%d, v%d, v%d" % (s, s, T0))
        MU, VAR, R1, R2 = SG + 2, SG + 3, SG + 4, SG + 5
        e.I("v_mul_f32 v%d, 0x%x, v%d" % (MU, f32(1.0 / 512), SG))
        e.I("v_mul_f32 v%d, 0x%x, v%d" % (VAR, f32(1.0 / 512), SG + 1))
        e.I("v_fma_f32 v%d, -v%d, v%d, v%d" % (VAR, MU, MU, VAR))
        e.I("v_max_f32 v%d, 0, v%d" % (VAR, VAR))
        e.I("v_add_f32 v%d, 0x%x, v%d" % (R1, f32(1e-5), VAR))
        e.I("v_rsq_f32 v%d, v%d" % (R1, R1))
        e.I("v_mul_f32 v%d, v%d, v%d" % (R2, R1, R1))
        e.I("v_mul_f32 v%d, v%d, v%d" % (R2, R2, VAR))
        e.I("v_add_f32 v%d, 0x%x, v%d" % (R2, f32(1e-5), R2))
        e.I("v_rsq_f32 v%d, v%d" % (R2, R2))
        e.I("v_mul_f32 v%d, v%d, v%d" % (R1, R1, R2))
        e.I("v_mul_f32 v%d, v%d, v%d" % (MU, MU, R1))
        for r in range(16):
            e.I("v_fma_f32 v%d, v%d, v%d, -v%d" % (X1 + r, X1 + r, R1, MU))
        HP = ACC + 16
        for r in range(8):
            e.I("v_cvt_pk_bf16_f32 v%d, v%d, v%d" % (HP + r, X1 + 2 * r, X1 + 2 * r + 1))
        e.I("v_and_b32 v%d, 31, v%d" % (T0, V_LANE))
        e.I("s_lshl_b32 s%d, s%d, 5" % (S_T0, S_SH))
        e.I("v_add_u32 v%d, s%d, v%d" % (T0, S_T0, T0))
        e.I("v_mul_u32_u24 v%d, 136, v%d" % (T0, T0))
        e.I("v_lshrrev_b32 v%d, 5, v%d" % (T1, V_LANE))
        e.I("v_lshlrev_b32 v%d, 3, v%d" % (T1, T1))
        e.I("v_add_u32 v%d, v%d, v%d" % (T0, T0, T1))
        e.I("s_lshl_b32 s%d, s%d, 6" % (S_T0, S_KH))
        self.sadd(S_T0, S_T0, L_T)
        e.I("v_add_u32 v%d, s%d, v%d" % (T0, S_T0, T0))
        for q in range(4):
            e.ds("ds_write_b64 v%d, %s offset:%d" % (T0, vr(HP + 2 * q, 2), 16 * q))
        e.I("v_lshrrev_b32 v%d, 4, v%d" % (T0 + 2, V_LANE))
        e.I("v_lshlrev_b32 v%d, 3, v%d" % (T0 + 2, T0 + 2))
        e.I("v_bfe_u32 v%d, v%d, 2, 2" % (T1, V_LANE))
        e.I("v_add_u32 v%d, v%d, v%d" % (T0 + 2, T0 + 2, T1))
        e.I("s_lshl_b32 s%d, s%d, 5" % (S_T0, S_KH))
        e.I("v_add_u32 v%d, s%d, v%d" % (T0 + 2, S_T0, T0 + 2))
        e.I("v_mul_u32_u24 v%d, 136, v%d" % (T0 + 2, T0 + 2))
        e.I("v_and_b32 v%d, 3, v%d" % (T1, V_LANE))
        e.I("v_lshlrev_b32 v%d, 3, v%d" % (T1, T1))
        e.I("v_add_u32 v%d, v%d, v%d" % (T0 + 2, T0 + 2, T1))
        e.I("s_lshl_b32 s%d, s%d, 6" % (S_T0, S_SH))
        self.sadd(S_T0, S_T0, L_T)
        e.I("v_add_u32 v%d, s%d, v%d" % (T0 + 2, S_T0, T0 + 2))
        self.off_h(S_T0, l)
        e.barrier()
        HG = OF
        for k in range(2):
            e.ds("ds_read_b64_tr_b16 %s, v%d offset:%d" % (vr(HG + 4 * k, 2), T0 + 2, 32 * k))
            e.ds("ds_read_b64_tr_b16 %s, v%d offset:%d" % (vr(HG + 4 * k + 2, 2), T0 + 2, 32 * k + 4 * 136))
        e.drain_ds()
        for k in range(2):
            self.ws_store(vr(HG + 4 * k, 4), 4, VG, S_T0, k * 1024)

    def p4(self, l):
        e = self.e
        ACC = VT
        RD = 4
        HF = ACC + 48
        VGA = HF + 16 * RD
        T0, T1 = VGA + 4, VGA + 5
        BI = VGA + 6
        assert BI + 6 <= 136, BI
        for a in range(4):
            e.I("s_xor_b32 s%d, s%d, %d" % (S_T0, S_WAVE, a))
            e.I("s_lshl_b32 s%d, s%d, 10" % (S_T0, S_T0))
            e.I("v_lshlrev_b32 v%d, 4, v%d" % (VGA + a, V_LANE))
            e.I("v_add_u32 v%d, s%d, v%d" % (VGA + a, S_T0, VGA + a))
        e.I("s_lshl_b32 s%d, s%d, 6" % (S_B0, S_J4))
        e.I("s_lshl_b32 s%d, s%d, 4" % (S_T0, S_WAVE))
        e.I("s_add_u32 s%d, s%d, s%d" % (S_B0, S_B0, S_T0))
        e.I("s_lshl_b32 s%d, s%d, 12" % (S_B0, S_B0))
        self.sadd(S_B0, S_B0, WS_H[l])

        def hload(i):
            self.rot_step(S_T0, i, S_ROT4, 16)
            e.I("s_lshl_b32 s%d, s%d, 12" % (S_T0, S_T0))
            e.I("s_add_u32 s%d, s%d, s%d" % (S_T0, S_T0, S_B0))
            for a in range(4):
                last = self.ws_load(vr(HF + 16 * (i % RD) + 4 * a, 4), 4, VGA + a, S_T0)
            return last
        hid = {i: hload(i) for i in range(RD)}
        e.I("v_lshrrev_b32 v%d, 4, v%d" % (T0, V_LANE))
        e.I("v_lshlrev_b32 v%d, 3, v%d" % (T0, T0))
        e.I("s_mul_i32 s%d, s%d, 96" % (S_T0, S_T))
        for ft in range(3):
            bid = e.vm("buffer_load_dwordx2 %s, v%d, %s, s%d offen offset:%d"
                       % (vr(BI + 2 * ft, 2), T0, sr(S_B1, 4), S_T0, 32 * ft))
        if l == 0:
            self.bg_flush()

        def chk(i):
            e.wait_vm(hid[i])
            hi = RD if i == 0 else min(i + RD - 1, 16)

            def reissue(i=i, hi=hi):
                for k in range(i, hi):
                    hload(k)
            self.check([HF + 16 * (i % RD) + k for k in range(16)], reissue, "p4", T0)
        chk(0)
        self.stamp("P4 first h L%d" % l)
        for i in range(16):
            n = 0
            for ft in range(3):
                for a in range(4):
                    c = ACC + 4 * (4 * ft + a)
                    e.I("v_mfma_f32_16x16x32_bf16 %s, %s, %s, %s"
                        % (vr(c, 4), w1_reg(i, 4 * ft, 4), vr(HF + 16 * (i % RD) + 4 * a, 4), vr(c, 4) if i else "0"))
                    n += 1
                    if n == 2 and i + 1 < 16:
                        chk(i + 1)
            if i + RD < 16:
                hid[i + RD] = hload(i + RD)
        self.stamp("P4 main done L%d" % l)
        VL = VGA
        e.I("v_lshlrev_b32 v%d, 4, v%d" % (VL, V_LANE))
        e.barrier()
        for a in range(1, 4):
            e.I("s_xor_b32 s%d, s%d, %d" % (S_T0, S_WAVE, a))
            e.I("s_mul_i32 s%d, s%d, 3" % (S_T0, S_T0))
            e.I("s_add_u32 s%d, s%d, %d" % (S_T0, S_T0, a - 1))
            e.I("s_mul_i32 s%d, s%d, 3072" % (S_T0, S_T0))
            self.sadd(S_T0, S_T0, L_RED)
            e.I("v_add_u32 v%d, s%d, v%d" % (T0, S_T0, VL))
            for ft in range(3):
                e.ds("ds_write_b128 v%d, %s offset:%d" % (T0, vr(ACC + 4 * (4 * ft + a), 4), ft * 1024))
        e.I("s_mul_i32 s%d, s%d, %d" % (S_T0, S_WAVE, 3 * 3072))
        self.sadd(S_T0, S_T0, L_RED)
        e.I("v_add_u32 v%d, s%d, v%d" % (T0, S_T0, VL))
        e.I("v_lshrrev_b32 v%d, 5, v%d" % (T1, V_LANE))
        e.I("v_lshlrev_b32 v%d, 9, v%d" % (T1, T1))
        e.I("v_and_b32 v%d, 15, v%d" % (VL + 1, V_LANE))
        e.I("v_lshlrev_b32 v%d, 4, v%d" % (VL + 1, VL + 1))
        e.I("v_add_u32 v%d, v%d, v%d" % (T1, T1, VL + 1))
        e.I("v_bfe_u32 v%d, v%d, 4, 1" % (VL + 1, V_LANE))
        e.I("v_lshlrev_b32 v%d, 3, v%d" % (VL + 1, VL + 1))
        e.I("v_add_u32 v%d, v%d, v%d" % (T1, T1, VL + 1))
        e.I("s_lshl_b32 s%d, s%d, 8" % (S_T0, S_SH))
        e.I("v_add_u32 v%d, s%d, v%d" % (T1, S_T0, T1))
        self.off_u(S_B0, l)
        c0 = -2.0 * math.log2(math.e) * math.sqrt(2.0 / math.pi)
        c1 = c0 * 0.044715
        K0, K1 = HF + 48, HF + 50
        for k in range(2):
            e.I("v_mov_b32 v%d, 0x%x" % (K0 + k, f32(c0)))
            e.I("v_mov_b32 v%d, 0x%x" % (K1 + k, f32(c1)))
        BU = HF + 36
        for ft in range(3):
            if ft == 0:
                e.wait_vm(bid)
            for r in range(2):
                e.I("v_lshlrev_b32 v%d, 16, v%d" % (BU + 4 * ft + 2 * r, BI + 2 * ft + r))
                e.I("v_and_b32 v%d, 0xffff0000, v%d" % (BU + 4 * ft + 2 * r + 1, BI + 2 * ft + r))
        for ft in range(3):
            a0 = ACC + 16 * ft
            for r in (0, 2):
                e.I("v_pk_add_f32 %s, %s, %s" % (vr(a0 + r, 2), vr(a0 + r, 2), vr(BU + 4 * ft + r, 2)))
        e.barrier()
        RR = HF
        rid = {}
        for ft in range(3):
            for a in range(3):
                rid[ft] = e.ds("ds_read_b128 %s, v%d offset:%d" % (vr(RR + 12 * a + 4 * ft, 4), T0, a * 3072 + ft * 1024))
        TT = HF + 52
        UP = HF + 60
        for ft in range(3):
            e.wait_ds(rid[ft])
            a0 = ACC + 16 * ft
            for r in (0, 2):
                e.I("v_pk_add_f32 %s, %s, %s" % (vr(RR + 4 * ft + r, 2), vr(RR + 4 * ft + r, 2), vr(RR + 12 + 4 * ft + r, 2)))
                e.I("v_pk_add_f32 %s, %s, %s" % (vr(a0 + r, 2), vr(a0 + r, 2), vr(RR + 24 + 4 * ft + r, 2)))
            for r in (0, 2):
                e.I("v_pk_add_f32 %s, %s, %s" % (vr(a0 + r, 2), vr(a0 + r, 2), vr(RR + 4 * ft + r, 2)))
            for r in (0, 2):
                e.I("v_pk_mul_f32 %s, %s, %s" % (vr(TT + r, 2), vr(a0 + r, 2), vr(a0 + r, 2)))
            for r in (0, 2):
                e.I("v_pk_fma_f32 %s, %s, %s, %s" % (vr(TT + r, 2), vr(TT + r, 2), vr(K1, 2), vr(K0, 2)))
            for r in (0, 2):
                e.I("v_pk_mul_f32 %s, %s, %s" % (vr(TT + r, 2), vr(TT + r, 2), vr(a0 + r, 2)))
            for r in range(4):
                e.I("v_exp_f32 v%d, v%d" % (TT + r, TT + r))
            for r in range(4):
                e.I("v_add_f32 v%d, 1.0, v%d" % (TT + r, TT + r))
            for r in range(4):
                e.I("v_rcp_f32 v%d, v%d" % (TT + r, TT + r))
            for r in (0, 2):
                e.I("v_pk_mul_f32 %s, %s, %s" % (vr(a0 + r, 2), vr(a0 + r, 2), vr(TT + r, 2)))
            for r in range(2):
                e.I("v_cvt_pk_bf16_f32 v%d, v%d, v%d" % (UP + 2 * (ft & 1) + r, a0 + 2 * r, a0 + 2 * r + 1))
            self.ws_store(vr(UP + 2 * (ft & 1), 2), 2, T1, S_B0, ft * 1024)

    def p5(self, l):
        e = self.e
        ACC = VT
        RD = 7
        UF = ACC + 64
        VG, T0, T1 = UF + 8 * RD, UF + 8 * RD + 1, UF + 8 * RD + 2
        assert T1 + 2 < 136
        e.I("v_lshlrev_b32 v%d, 4, v%d" % (VG, V_LANE))
        e.I("s_mul_i32 s%d, s%d, %d" % (S_B0, S_J, 2 * 96 * 1024))
        self.sadd(S_B0, S_B0, WS_U[l])
        VG1, VG0 = T1 + 1, T1 + 2
        e.I("s_mul_i32 s%d, s%d, %d" % (S_T0, S_KH, 96 * 1024))
        e.I("v_add_u32 v%d, s%d, v%d" % (VG0, S_T0, VG))
        e.I("s_sub_u32 s%d, %d, s%d" % (S_T0, 96 * 1024, S_T0))
        e.I("v_add_u32 v%d, s%d, v%d" % (VG1, S_T0, VG))
        e.I("s_mul_i32 s%d, s%d, 22" % (S_B2X, S_WAVE))

        def uload(i):
            self.rot_step(S_T0, i, S_ROT5, 22)
            e.I("s_add_u32 s%d, s%d, s%d" % (S_T0, S_T0, S_B2X))
            e.I("s_min_u32 s%d, s%d, 85" % (S_T0, S_T0))
            e.I("s_lshl_b32 s%d, s%d, 10" % (S_T0, S_T0))
            e.I("s_add_u32 s%d, s%d, s%d" % (S_T0, S_T0, S_B0))
            self.ws_load(vr(UF + 8 * (i % RD), 4), 4, VG0, S_T0)
            return self.ws_load(vr(UF + 8 * (i % RD) + 4, 4), 4, VG1, S_T0)
        uid = {i: uload(i) for i in range(RD)}
        if l == 0:
            for f in self.dma_wpk_ops(V_BG + 5, S_BG0, S_BG1):
                f()

        def chk(i):
            e.wait_vm(uid[i])
            hi = RD if i == 0 else min(i + RD - 1, 22)

            def reissue(i=i, hi=hi):
                for k in range(i, hi):
                    uload(k)
            self.check([UF + 8 * (i % RD) + k for k in range(8)], reissue, "p5", T0)
        chk(0)
        self.stamp("P5 first u L%d" % l)
        for i in range(22):
            for a in range(2):
                for b in range(2):
                    c = ACC + 16 * (2 * a + b)
                    e.I("v_mfma_f32_32x32x16_bf16 %s, %s, %s, %s"
                        % (vr(c, 16), vr(UF + 8 * (i % RD) + 4 * a, 4), w2_reg(i, 4 * b, 4), vr(c, 16) if i else "0"))
                    if a == 0 and b == 0 and i + 1 < 22:
                        chk(i + 1)
            if i + RD < 22:
                uid[i + RD] = uload(i + RD)
        self.stamp("P5 main done L%d" % l)
        e.barrier()
        for q in range(1, 4):
            e.I("s_xor_b32 s%d, s%d, %d" % (S_T0, S_WAVE, q))
            e.I("s_mul_i32 s%d, s%d, 3" % (S_T0, S_T0))
            e.I("s_add_u32 s%d, s%d, %d" % (S_T0, S_T0, q - 1))
            e.I("s_lshl_b32 s%d, s%d, 12" % (S_T0, S_T0))
            self.sadd(S_T0, S_T0, L_RED)
            e.I("v_add_u32 v%d, s%d, v%d" % (T0, S_T0, VG))
            for k in range(4):
                e.ds("ds_write_b128 v%d, %s offset:%d" % (T0, vr(ACC + 16 * q + 4 * k, 4), k * 1024))
            e.wait_ds(e.dsq[-4])
        XU = UF
        self.unpack_xr(XU)
        e.I("s_mul_i32 s%d, s%d, %d" % (S_T0, S_WAVE, 3 * 4096))
        self.sadd(S_T0, S_T0, L_RED)
        e.I("v_add_u32 v%d, s%d, v%d" % (T0, S_T0, VG))
        e.I("v_mov_b32 v%d, v%d" % (XU + 16, V_B2))
        e.I("v_mov_b32 v%d, v%d" % (XU + 17, V_B2))
        for r in range(0, 16, 2):
            e.I("v_pk_add_f32 %s, %s, %s" % (vr(XU + r, 2), vr(XU + r, 2), vr(XU + 16, 2)))
        for r in range(0, 16, 2):
            e.I("v_pk_add_f32 %s, %s, %s" % (vr(ACC + r, 2), vr(ACC + r, 2), vr(XU + r, 2)))
        e.barrier()
        for q in range(1, 4):
            for k in range(4):
                e.ds("ds_read_b128 %s, v%d offset:%d" % (vr(ACC + 16 * q + 4 * k, 4), T0, (q - 1) * 4096 + k * 1024))
        e.wait_ds(e.dsq[-5])
        for r in range(0, 16, 2):
            e.I("v_pk_add_f32 %s, %s, %s" % (vr(ACC + 16 + r, 2), vr(ACC + 16 + r, 2), vr(ACC + 32 + r, 2)))
        e.drain_ds()
        for r in range(0, 16, 2):
            e.I("v_pk_add_f32 %s, %s, %s" % (vr(ACC + r, 2), vr(ACC + r, 2), vr(ACC + 48 + r, 2)))
        for r in range(0, 16, 2):
            e.I("v_pk_add_f32 %s, %s, %s" % (vr(ACC + r, 2), vr(ACC + r, 2), vr(ACC + 16 + r, 2)))
        for r in range(8):
            e.I("v_cvt_pk_bf16_f32 v%d, v%d, v%d" % (V_XR + r, ACC + 2 * r, ACC + 2 * r + 1))
        if l == 0:
            self.off_x0(S_T0)
            self.ws_store_near([(vr(V_XR + 4 * k, 4), 4, VG, S_T0, k * 1024) for k in range(2)])
            self.unpack_xr(ACC)
            self.row_stats(ACC, ACC + 16, T0)
            e.I("v_and_b32 v%d, 31, v%d" % (T1, V_LANE))
            e.I("v_lshlrev_b32 v%d, 3, v%d" % (T1, T1))
            self.off_st(S_T0, WS_ST2)
            self.ws_store_near([(vr(ACC + 16, 2), 2, T1, S_T0, 0)])
        else:
            for k in range(8):
                e.I("v_mov_b32 v%d, v%d" % (ACC + k, V_XR + k))
            for k in range(2):
                e.I("v_permlane32_swap_b32 v%d, v%d" % (ACC + 4 * k, ACC + 4 * k + 2))
                e.I("v_permlane32_swap_b32 v%d, v%d" % (ACC + 4 * k + 1, ACC + 4 * k + 3))
            e.I("v_and_b32 v%d, 31, v%d" % (T0, V_LANE))
            e.I("s_lshl_b32 s%d, s%d, 6" % (S_T0, S_SB))
            e.I("s_lshl_b32 s%d, s%d, 5" % (S_T1, S_SH))
            e.I("s_add_u32 s%d, s%d, s%d" % (S_T0, S_T0, S_T1))
            e.I("v_add_u32 v%d, s%d, v%d" % (T0, S_T0, T0))
            e.I("v_lshlrev_b32 v%d, 10, v%d" % (T0, T0))
            e.I("v_lshrrev_b32 v%d, 5, v%d" % (T1, V_LANE))
            e.I("v_lshlrev_b32 v%d, 4, v%d" % (T1, T1))
            e.I("v_add_u32 v%d, v%d, v%d" % (T0, T0, T1))
            e.I("s_lshl_b32 s%d, s%d, 7" % (S_T0, S_J))
            e.I("s_lshl_b32 s%d, s%d, 6" % (S_T1, S_KH))
            e.I("s_add_u32 s%d, s%d, s%d" % (S_T0, S_T0, S_T1))
            for k in range(2):
                e.vm("buffer_store_dwordx4 %s, v%d, %s, s%d offen offset:%d%s"
                     % (vr(ACC + 4 * k, 4), T0, sr(S_OUT, 4), S_T0, 32 * k, " sc1" if self.o.out_sc1 else ""))
```

```python
import argparse
import os
import sys

sys.path.insert(0, os.path.dirname(os.path.abspath(__file__)))
from g2_p345 import *

HEADER = """; Sliding-window attention / token-mixer stack as one persistent kernel: 256 workgroups, one per CU.
; @launch grid=(256,1,1) block=(256,1,1) lds=%d
.amdgcn_target "amdgcn-amd-amdhsa--gfx950"
.text
.globl %s
.p2align 8
.type %s,@function
%s:
"""

FOOTER = """
L_CODE_END:
.section .rodata,"a"
.p2align 6
.amdhsa_kernel %s
  .amdhsa_next_free_vgpr 512
  .amdhsa_next_free_sgpr 102
  .amdhsa_accum_offset 256
  .amdhsa_group_segment_fixed_size 0
  .amdhsa_kernarg_size 88
  .amdhsa_user_sgpr_count 2
  .amdhsa_user_sgpr_kernarg_segment_ptr 1
  .amdhsa_system_sgpr_workgroup_id_x 1
  .amdhsa_float_denorm_mode_32 3
.end_amdhsa_kernel
"""


class Gen(P345):
    def build(self):
        e = self.e
        stop = self.o.stop
        self.prologue()
        done = False
        for l in range(2):
            for name in ("p1", "p2", "p3", "p4", "p5"):
                if name == "p1":
                    if l == 0:
                        self.stamp("start")
                        self.p1_l0()
                    else:
                        self.p1_l1()
                else:
                    getattr(self, name)(l)
                self.stamp("%s end L%d" % (name, l))
                if stop == "%s_%d" % (name, l):
                    done = True
                    break
            if done:
                break
        self.bg_flush()
        self.stamp_flush()
        e.drain()
        e.label("L_END")
        e.I("s_endpgm")
        return e.text()


def main():
    ap = argparse.ArgumentParser()
    ap.add_argument("-o", default="interleave_layers__sliding_block__mixer_token_mlp__prompt.s")
    ap.add_argument("--stop", default="")
    ap.add_argument("--prof", action="store_true")
    ap.add_argument("--no-local", action="store_true")
    ap.add_argument("--out-sc1", action="store_true")
    ap.add_argument("--budget", type=int, default=100000)
    ap.add_argument("--rot4", type=int, default=2)
    ap.add_argument("--rot5", type=int, default=5)
    ap.add_argument("--w1-first", type=int, default=30)
    ap.add_argument("--w1-second", type=int, default=18)
    ap.add_argument("--w-first", type=int, default=8)
    ap.add_argument("--w1-tr", type=lambda s: [int(x) for x in s.split(",")], default=[8])
    ap.add_argument("--w2-tr", type=lambda s: [int(x) for x in s.split(",")], default=[0])
    opt = ap.parse_args()
    for p in range(192):
        assert (p * 171) >> 11 == p // 12 and (p * 342) >> 11 == p // 6
    g = Gen(opt)
    body = g.build()
    open(opt.o, "w").write(HEADER % (LDS_BYTES, KNAME, KNAME, KNAME) + body + FOOTER % KNAME)


if __name__ == "__main__":
    main()
```
